```python
import torch

def _softmax(x, axis=-1):
    return torch.softmax(x, dim=axis)
def _gelu(x):
    return torch.nn.functional.gelu(x, approximate="tanh")
def _silu(x):
    return torch.nn.functional.silu(x)
def _sigmoid(x):
    return torch.sigmoid(x)
def _layernorm(x, axis=-1, eps=1e-5):
    m = x.mean(dim=axis, keepdim=True)
    v = x.var(dim=axis, keepdim=True, unbiased=False)
    return (x - m) / torch.sqrt(v + eps)
def _scatter_add(tgt, idx, src, axis=0):
    return tgt.clone().index_add_(axis, idx, src)
def _segment_sum(src, seg, n):
    out = torch.zeros((n,) + src.shape[1:], dtype=src.dtype)
    return out.index_add_(0, seg, src)
def _pad(x, pw):
    flat = tuple(v for pair in reversed(pw) for v in pair)
    return torch.nn.functional.pad(x, flat)

kernel_name = 'concat_heads__ssm_conv_s5__compressed_kv_cla__prompt'

def setup_inputs():

    _w = (lambda a: (lambda t: t.to(torch.bfloat16) if t.is_floating_point() else t)(torch.as_tensor(a)))
    def _A_setup():
        B, S, D = 1, 2048, 640
        P = D
        Lambda_re = -0.5 * (lambda _x: torch.exp(torch.as_tensor(_x)))((lambda *s: torch.randn(*s, dtype=torch.bfloat16) * 0.2)(P))
        Lambda_im = (lambda *s: torch.randn(*s, dtype=torch.bfloat16) * 0.4)(P) * 1.0
        B_re = (lambda *s: torch.randn(*s, dtype=torch.bfloat16) * 0.2)(P, D) * (D ** -0.5)
        B_im = (lambda *s: torch.randn(*s, dtype=torch.bfloat16) * 0.2)(P, D) * (D ** -0.5)
        C_re = (lambda *s: torch.randn(*s, dtype=torch.bfloat16) * 0.2)(D, P) * (P ** -0.5)
        C_im = (lambda *s: torch.randn(*s, dtype=torch.bfloat16) * 0.2)(D, P) * (P ** -0.5)
        log_dt = (lambda *s: torch.randn(*s, dtype=torch.bfloat16) * 0.2)(P) * 0.3 - 2.0
        Dskip = (lambda *s: torch.randn(*s, dtype=torch.bfloat16) * 0.05)(D)
        return {
            "x": _w((lambda *s: torch.randn(*s, dtype=torch.bfloat16) * 0.05)(B, S, D)),
            "Lambda_re": _w(Lambda_re),
            "Lambda_im": _w(Lambda_im),
            "B_re": _w(B_re),
            "B_im": _w(B_im),
            "C_re": _w(C_re),
            "C_im": _w(C_im),
            "log_dt": _w(log_dt),
            "Dskip": _w(Dskip),
        }
    _A_in = _A_setup()

    def _B_setup():
        B, H, Sq, Sk, D, M = 1, 32, 2048, 2048, 128, 640
        Dc = 4 * D
        return {
            "x": _w((lambda *s: torch.randn(*s, dtype=torch.bfloat16) * 0.8)(B, Sq, M)),
            "c_kv": _w((lambda *s: torch.randn(*s, dtype=torch.bfloat16) * 0.2)(B, Sk, Dc)),
            "w_q": _w((lambda *s: torch.randn(*s, dtype=torch.bfloat16) * 3.2)(M, H, D) * (M ** -0.5)),
            "w_uk": _w((lambda *s: torch.randn(*s, dtype=torch.bfloat16) * 3.2)(Dc, H, D) * (Dc ** -0.5)),
            "w_uv": _w((lambda *s: torch.randn(*s, dtype=torch.bfloat16) * 0.2)(Dc, H, D) * (Dc ** -0.5)),
            "w_o": _w((lambda *s: torch.randn(*s, dtype=torch.bfloat16) * 0.2)(H, D, M) * ((H * D) ** -0.5)),
        }
    _B_in = _B_setup()

    return {
        "A_x": _A_in["x"],
        "A_Lambda_re": _A_in["Lambda_re"],
        "A_Lambda_im": _A_in["Lambda_im"],
        "A_B_re": _A_in["B_re"],
        "A_B_im": _A_in["B_im"],
        "A_C_re": _A_in["C_re"],
        "A_C_im": _A_in["C_im"],
        "A_log_dt": _A_in["log_dt"],
        "A_Dskip": _A_in["Dskip"],
        "B_x": _B_in["x"],
        "B_c_kv": _B_in["c_kv"],
        "B_w_q": _B_in["w_q"],
        "B_w_uk": _B_in["w_uk"],
        "B_w_uv": _B_in["w_uv"],
        "B_w_o": _B_in["w_o"],
    }

def reference(A_x, A_Lambda_re, A_Lambda_im, A_B_re, A_B_im, A_C_re, A_C_im, A_log_dt, A_Dskip, B_x, B_c_kv, B_w_q, B_w_uk, B_w_uv, B_w_o):
    def _A_ref(x, Lambda_re, Lambda_im, B_re, B_im, C_re, C_im, log_dt, Dskip):
        Bsz, L, H = x.shape
        Lam = Lambda_re + 1j * Lambda_im
        Bmat = B_re + 1j * B_im
        Cmat = C_re + 1j * C_im
        dt = torch.exp(log_dt)
        Lam_bar = torch.exp(dt * Lam)
        B_bar = ((Lam_bar - 1.0) / Lam)[:, None] * Bmat
        Bu = torch.einsum("bld,pd->blp", x + 0j, B_bar)
        h = torch.zeros_like(Bu[:, 0, :])
        hs = []
        for t in range(L):
            h = Lam_bar[None, :] * h + Bu[:, t, :]
            hs.append(h)
        hseq = torch.stack(hs, 1)
        y = 2.0 * torch.einsum("blp,dp->bld", hseq, Cmat).real + x * Dskip[None, None, :]
        return y

    def _B_ref(x, c_kv, w_q, w_uk, w_uv, w_o):
        B, Sq, M = x.shape[0], x.shape[1], x.shape[2]
        Sk = c_kv.shape[1]
        H, D = w_q.shape[1], w_q.shape[2]
        q = torch.einsum("bqm,mhd->bhqd", x, w_q)
        k = torch.einsum("bkc,chd->bhkd", c_kv, w_uk)
        v = torch.einsum("bkc,chd->bhkd", c_kv, w_uv)
        scores = torch.einsum("bhqd,bhkd->bhqk", q, k) * (D ** -0.5)
        off = Sk - Sq
        qi = torch.arange(Sq)[:, None]
        kj = torch.arange(Sk)[None, :]
        cmask = kj <= (qi + off)
        scores = torch.where(cmask[None, None], scores, -1e9)
        p = _softmax(scores, axis=-1)
        ctx = torch.einsum("bhqk,bhkd->bhqd", p, v)
        return torch.einsum("bhqd,hdm->bqm", ctx, w_o)

    a = _A_ref(A_x, A_Lambda_re, A_Lambda_im, A_B_re, A_B_im, A_C_re, A_C_im, A_log_dt, A_Dskip)
    b = _B_ref(B_x, B_c_kv, B_w_q, B_w_uk, B_w_uv, B_w_o)
    return torch.concatenate([a, b], axis=-1)
```

```python
import re

TRANS = ("v_exp_f32", "v_log_f32", "v_rcp_f32", "v_rsq_f32", "v_sqrt_f32", "v_sin_f32", "v_cos_f32", "v_rcp_iflag_f32", "v_exp_f16")

def regs_of(tok):
    tok = tok.strip()
    tok = re.sub(r"^(-|\|)|\|$", "", tok)
    tok = tok.replace("|", "")
    m = re.fullmatch(r"(neg|abs)\((.*)\)", tok)
    if m: tok = m.group(2)
    m = re.fullmatch(r"([vas])(\d+)", tok)
    if m: return {(m.group(1), int(m.group(2)))}
    m = re.fullmatch(r"([vas])\[(\d+):(\d+)\]", tok)
    if m: return {(m.group(1), i) for i in range(int(m.group(2)), int(m.group(3)) + 1)}
    if tok in ("vcc", "vcc_lo", "vcc_hi"): return {("s", 106), ("s", 107)}
    if tok == "m0": return {("m0", 0)}
    if tok in ("exec", "exec_lo", "exec_hi"): return {("exec", 0)}
    return set()

class I:
    __slots__ = ("text", "mn", "ops", "kind", "dst", "src", "A", "B", "C", "passes", "label", "target", "nops", "data", "sread", "lds")
    def __init__(self, text):
        self.text = text
        t = text.split(";")[0].strip()
        self.label = None; self.target = None; self.kind = "other"; self.mn = ""
        self.dst = set(); self.src = set(); self.A = set(); self.B = set(); self.C = set(); self.passes = 0
        self.nops = 1; self.data = set(); self.sread = set(); self.lds = False
        if not t:
            self.nops = 0; self.kind = "blank"; return
        if t.endswith(":"):
            self.label = t[:-1]; self.nops = 0; self.kind = "label"; return
        if t.startswith("."):
            self.nops = 0; self.kind = "blank"; return
        parts = t.split(None, 1)
        mn = parts[0]; self.mn = mn
        rest = parts[1] if len(parts) > 1 else ""
        ops = [o.strip() for o in re.split(r",(?![^\[]*\])", rest)] if rest else []
        mods = []
        if ops:
            lw = ops[-1].split()
            if lw:
                ops[-1] = lw[0]; mods = lw[1:]
        self.ops = ops
        R = [regs_of(o) for o in ops]
        if mn == "s_nop":
            self.nops = int(ops[0], 0) + 1; self.kind = "nop"
        elif mn.startswith("v_mfma"):
            self.kind = "mfma"; self.dst = R[0]; self.A = R[1]; self.B = R[2]; self.C = R[3]
            self.passes = 8 if "32x32" in mn else 4
            self.src = R[1] | R[2] | R[3]
        elif mn.startswith("v_"):
            self.kind = "valu"
            if mn.startswith("v_permlane") or mn.startswith("v_swap"):
                self.dst = R[0] | R[1]; self.src = R[0] | R[1]
            elif mn.startswith("v_cmpx"):
                self.dst = {("exec", 0)}; self.src = set().union(*R) if R else set()
            elif mn.startswith("v_nop"):
                pass
            else:
                self.dst = R[0]; self.src = set().union(*R[1:]) if len(R) > 1 else set()
                if "_co_" in mn:
                    self.dst = R[0] | R[1]; self.src = set().union(*R[2:])
                if "fmac" in mn or "_mac_" in mn or mn.startswith("v_dot2c") or mn.startswith("v_writelane"): self.src |= R[0]
                if mn.startswith("v_cndmask") and len(ops) == 3: self.src |= {("s", 106), ("s", 107)}
                if any(m.startswith("dst_unused") or m.startswith("op_sel") or m.startswith("quad_perm") or m.startswith("row_") for m in mods): self.src |= R[0]
        elif mn.startswith("ds_"):
            self.kind = "ds"
            if mn.startswith("ds_read") or mn.startswith("ds_bpermute") or mn.startswith("ds_permute") or mn.startswith("ds_swizzle"):
                self.dst = R[0]; self.src = set().union(*R[1:])
            else:
                self.src = set().union(*R); self.data = set().union(*R[1:]) if len(R) > 1 else set()
        elif mn.startswith("buffer_") or mn.startswith("global_"):
            self.kind = "vmem"
            self.lds = "lds" in mods or "_lds_" in mn
            if "load" in mn and not self.lds:
                self.dst = R[0]; self.src = set().union(*R[1:])
            elif "atomic" in mn and "sc0" in mods:
                self.dst = R[0]; self.src = set().union(*R)
            else:
                self.src = set().union(*R)
                if "store" in mn and ("x3" in mn or "x4" in mn):
                    self.data = R[0] if mn.startswith("buffer_") else R[1]
            if self.lds: self.src |= {("m0", 0)}
        elif mn.startswith("s_"):
            self.kind = "salu"
            if mn.startswith("s_cbranch") or mn == "s_branch":
                self.kind = "branch"; self.target = ops[0]
            elif mn in ("s_waitcnt", "s_barrier", "s_endpgm", "s_setprio", "s_sleep", "s_nop"):
                pass
            elif mn.startswith("s_cmp") or mn.startswith("s_bitcmp"):
                self.src = set().union(*R)
            else:
                self.dst = R[0] if R else set(); self.src = set().union(*R[1:]) if len(R) > 1 else set()
        else:
            raise ValueError("unknown instr " + text)

def need(p, c):
    n = 0
    vd = {r for r in p.dst if r[0] in "va"}
    sd = {r for r in p.dst if r[0] == "s"}
    if p.kind == "valu":
        if c.kind == "mfma" and vd & c.src: n = max(n, 2)
        if p.mn.startswith(TRANS) and c.kind == "valu" and not c.mn.startswith(TRANS) and vd & c.src: n = max(n, 1)
        if p.mn.startswith(TRANS) and c.kind in ("vmem", "ds") and vd & c.src: n = max(n, 1)
        if c.mn.startswith(("v_readfirstlane", "v_readlane")) and vd & c.src: n = max(n, 1)
        if c.mn.startswith("v_permlane") and vd & c.src: n = max(n, 2)
        if c.kind == "valu" and ("quad_perm" in c.text or "row_" in c.text or "dpp" in c.text) and vd & c.src: n = max(n, 2)
        if sd:
            if c.kind == "vmem" and sd & c.src: n = max(n, 5)
            if c.kind == "valu" and sd & c.src: n = max(n, 4 if c.mn.startswith(("v_readlane", "v_writelane", "v_div_fmas")) else 2)
            if c.kind in ("salu", "branch") and (sd & c.src or c.kind == "branch"): n = max(n, 1)
        if ("exec", 0) in p.dst:
            if c.kind == "mfma": n = max(n, 4)
            if c.kind == "valu": n = max(n, 5 if ("dpp" in c.text or "row_" in c.text) else (4 if c.mn.startswith(("v_readlane", "v_readfirstlane", "v_writelane", "v_permlane")) else 0))
        if p.mn.startswith("v_dot"):
            if c.kind in ("valu", "mfma", "vmem", "ds") and vd & (c.src | c.dst) and not (c.mn == p.mn and not (vd & (c.src - c.dst))): n = max(n, 3)
        if "op_sel" in p.text or "sdwa" in p.text or "dst_sel" in p.text:
            if c.kind == "valu" and vd & (c.src | c.dst): n = max(n, 1)
    if p.kind == "mfma":
        big = 12 if p.passes == 8 else 8
        if c.kind == "mfma":
            if vd & (c.A | c.B): n = max(n, big)
            if vd & c.C:
                if not (c.C == vd and c.passes == p.passes): n = max(n, 10 if p.passes == 8 else 6)
            elif vd & c.dst: n = max(n, big)
        elif c.kind in ("valu", "vmem", "ds"):
            if vd & (c.src | c.dst): n = max(n, big)
            if c.kind == "valu" and p.C & c.dst: n = max(n, 7 if p.passes == 8 else 3)
            if c.kind in ("vmem", "ds") and p.C & c.dst: n = max(n, 7 if p.passes == 8 else 3)
    if p.kind == "vmem" and p.data:
        if p.data & c.dst: n = max(n, 2)
    if p.kind == "salu" and ("m0", 0) in p.dst:
        if c.kind == "vmem" and c.lds: n = max(n, 1)
    if p.kind == "salu" and ("exec", 0) in p.dst and c.kind == "mfma": n = max(n, 1)
    return n

class Asm:
    def __init__(self):
        self.ins = []
        self.vm = []
        self.lg = []
        self.uid = 0
    def __call__(self, text, vm=None, lg=None):
        for line in text.split("\n"):
            if not line.strip(): continue
            i = I(line.strip())
            self.ins.append(i)
            if i.kind == "vmem":
                self.vm.append(vm)
            if i.kind == "ds":
                self.lg.append(lg)
            if i.mn == "s_waitcnt":
                m = re.search(r"vmcnt\((\d+)\)", i.text)
                if m:
                    k = int(m.group(1)); self.vm = self.vm[len(self.vm) - k:] if k < len(self.vm) else self.vm
                    if k == 0: self.vm = []
                m = re.search(r"lgkmcnt\((\d+)\)", i.text)
                if m:
                    k = int(m.group(1)); self.lg = self.lg[len(self.lg) - k:] if k < len(self.lg) else self.lg
                    if k == 0: self.lg = []
    def c(self, text): self.ins.append(I("; " + text))
    def label(self, l): self(l + ":")
    def newlabel(self, p="L"):
        self.uid += 1; return f".{p}{self.uid}"
    def _cnt(self, q, tags):
        last = -1
        for idx, t in enumerate(q):
            if t in tags: last = idx
        if last < 0: return None
        return len(q) - 1 - last
    def wait(self, vm=(), lg=()):
        if isinstance(vm, (str, tuple)) and not isinstance(vm, list): vm = [vm] if vm != () else []
        if isinstance(lg, (str, tuple)) and not isinstance(lg, list): lg = [lg] if lg != () else []
        s = []
        a = self._cnt(self.vm, vm) if vm else None
        if a is not None: s.append(f"vmcnt({min(a, 63)})")
        b = self._cnt(self.lg, lg) if lg else None
        if b is not None: s.append(f"lgkmcnt({min(b, 15)})")
        if s: self("s_waitcnt " + " ".join(s))
    def pad(self):
        W = 24
        def req(seq_before, c):
            n = 0; dist = 0
            for p in reversed(seq_before):
                if dist > W: break
                if p.nops == 0: continue
                r = need(p, c)
                if r > dist: n = max(n, r - dist)
                dist += p.nops
            return n
        changed = True; it = 0
        while changed:
            changed = False; it += 1
            assert it < 20
            out = []
            for c in self.ins:
                if c.nops and c.kind != "nop":
                    seq = []
                    for p in reversed(out[-60:]):
                        if p.mn in ("s_branch", "s_endpgm"): break
                        seq.append(p)
                    seq.reverse()
                    n = req(seq, c)
                    if n:
                        out.append(I(f"s_nop {n-1}")); changed = True
                out.append(c)
            self.ins = out
            lab = {x.label: k for k, x in enumerate(self.ins) if x.label}
            ins_at = {}
            for k, b in enumerate(self.ins):
                if b.kind == "branch" and b.target in lab:
                    seq = self.ins[max(0, k - 60):k + 1]
                    for z in range(len(seq) - 2, -1, -1):
                        if seq[z].mn in ("s_branch", "s_endpgm"):
                            seq = seq[z + 1:]; break
                    t = lab[b.target]; path = list(seq); d = 0
                    for c in self.ins[t:t + 40]:
                        if c.nops and c.kind != "nop":
                            n = req(path, c)
                            if n and req(path[len(seq):], c) < n:
                                ins_at[t] = max(ins_at.get(t, 0), n); break
                        path.append(c); d += c.nops
                        if d > W or c.mn in ("s_branch", "s_endpgm"): break
            if ins_at:
                changed = True
                for t in sorted(ins_at, reverse=True):
                    self.ins.insert(t + 1, I(f"s_nop {ins_at[t]-1}"))
    def text(self):
        self.pad()
        return "\n".join(("" if (i.label or i.text.startswith(".")) else "  ") + i.text for i in self.ins) + "\n"

def vr(a, n=1): return f"v{a}" if n == 1 else f"v[{a}:{a+n-1}]"
def sr(a, n=1): return f"s{a}" if n == 1 else f"s[{a}:{a+n-1}]"
```

```python
NAME = "concat_heads__ssm_conv_s5__compressed_kv_cla__prompt"
def header(launches):
    s = "; generated\n"
    for (k, g, b, lds) in launches:
        s += f"; @launch kernel={k} grid=({g},1,1) block=({b},1,1) lds={lds}\n"
    s += '.amdgcn_target "amdgcn-amd-amdhsa--gfx950"\n.text\n'
    return s
def kbegin(k):
    return f".globl {k}\n.p2align 8\n.type {k},@function\n{k}:\n"
def kdesc(k, vgpr=256, accum=256, sgpr=102):
    return f""".p2align 6
.amdhsa_kernel {k}
  .amdhsa_next_free_vgpr {vgpr}
  .amdhsa_next_free_sgpr {sgpr}
  .amdhsa_accum_offset {accum}
  .amdhsa_group_segment_fixed_size 0
  .amdhsa_kernarg_size 144
  .amdhsa_user_sgpr_count 2
  .amdhsa_user_sgpr_kernarg_segment_ptr 1
  .amdhsa_system_sgpr_workgroup_id_x 1
.end_amdhsa_kernel
"""
```

```python
from asmlib import *
from common import *
import struct
WS_KV = 0
WS_HT = 32 << 20
WS_EC = 40 << 20
WS_HTF = 41 << 20
WS_CTX = 48 << 20
WS_WOF = 64 << 20
WS_CF = 70 << 20
HT_BYTES = 16 * 20 * 4 * 4096
EC_BYTES = 16 * 640 * 8
HTF_BYTES = 32 * 40 * 4096
CTX_BYTES = 32 * 128 * 4096
WOF_BYTES = 8 * 128 * 5 * 1024
CF_BYTES = 8 * 40 * 5 * 1024
import os
STORE_MOD = os.environ.get("STORE_MOD", "sc1")
LOG2E = 1.4426950408889634
def f2u(x): return "0x%08x" % struct.unpack("<I", struct.pack("<f", x))[0]

def srd(a, s, karg):
    a(f"s_load_dwordx2 s[{s}:{s+1}], s[0:1], {karg}")
def srd_fin(a, s, size, add=0):
    if add:
        a(f"s_add_u32 s{s}, s{s}, {add}")
        a(f"s_addc_u32 s{s+1}, s{s+1}, 0")
    a(f"s_mov_b32 s{s+2}, {size}")
    a(f"s_mov_b32 s{s+3}, 0x00020000")

def lam_params(a, vlr, vli, vdt, Lr, Li, t0, t1, want_coef=None):
    a(f"v_lshlrev_b32 {vr(vlr)}, 16, {vr(vlr)}")
    a(f"v_lshlrev_b32 {vr(vli)}, 16, {vr(vli)}")
    a(f"v_lshlrev_b32 {vr(vdt)}, 16, {vr(vdt)}")
    a(f"v_mul_f32 {vr(vdt)}, {f2u(LOG2E)}, {vr(vdt)}")
    a(f"v_exp_f32 {vr(vdt)}, {vr(vdt)}")
    a(f"v_cvt_pk_bf16_f32 {vr(vdt)}, {vr(vdt)}, {vr(vdt)}")
    a(f"v_and_b32 {vr(vdt)}, 0xffff0000, {vr(vdt)}")
    a(f"v_mul_f32 {vr(t0)}, {vr(vdt)}, {vr(vlr)}")
    a(f"v_mul_f32 {vr(t1)}, {vr(vdt)}, {vr(vli)}")
    a(f"v_mul_f32 {vr(t0)}, {f2u(LOG2E)}, {vr(t0)}")
    a(f"v_exp_f32 {vr(t0)}, {vr(t0)}")
    a(f"v_mul_f32 {vr(t1)}, {f2u(0.15915494309189535)}, {vr(t1)}")
    a(f"v_cos_f32 {vr(Lr)}, {vr(t1)}")
    a(f"v_sin_f32 {vr(Li)}, {vr(t1)}")
    a(f"v_mul_f32 {vr(Lr)}, {vr(Lr)}, {vr(t0)}")
    a(f"v_mul_f32 {vr(Li)}, {vr(Li)}, {vr(t0)}")
    if want_coef:
        cr, ci = want_coef
        a(f"v_add_f32 {vr(t0)}, -1.0, {vr(Lr)}")
        a(f"v_mul_f32 {vr(t1)}, {vr(vlr)}, {vr(vlr)}")
        a(f"v_fmac_f32 {vr(t1)}, {vr(vli)}, {vr(vli)}")
        a(f"v_rcp_f32 {vr(t1)}, {vr(t1)}")
        a(f"v_mul_f32 {vr(cr)}, {vr(t0)}, {vr(vlr)}")
        a(f"v_fmac_f32 {vr(cr)}, {vr(Li)}, {vr(vli)}")
        a(f"v_mul_f32 {vr(ci)}, {vr(Li)}, {vr(vlr)}")
        a(f"v_fma_f32 {vr(ci)}, -{vr(t0)}, {vr(vli)}, {vr(ci)}")
        a(f"v_add_f32 {vr(t1)}, {vr(t1)}, {vr(t1)}")
        a(f"v_mul_f32 {vr(cr)}, {vr(cr)}, {vr(t1)}")
        a(f"v_mul_f32 {vr(ci)}, {vr(ci)}, {vr(t1)}")

def csq(a, r, i, t):
    a(f"v_mul_f32 {vr(t)}, {vr(i)}, {vr(i)}")
    a(f"v_mul_f32 {vr(i)}, {vr(r)}, {vr(i)}")
    a(f"v_fma_f32 {vr(r)}, {vr(r)}, {vr(r)}, -{vr(t)}")
    a(f"v_add_f32 {vr(i)}, {vr(i)}, {vr(i)}")
def cmul(a, dr, di, ar, ai, br, bi, t):
    a(f"v_mul_f32 {vr(t)}, {vr(ar)}, {vr(br)}")
    a(f"v_fma_f32 {vr(t)}, -{vr(ai)}, {vr(bi)}, {vr(t)}")
    a(f"v_mul_f32 {vr(t+1)}, {vr(ar)}, {vr(bi)}")
    a(f"v_fma_f32 {vr(di)}, {vr(ai)}, {vr(br)}, {vr(t+1)}")
    a(f"v_mov_b32 {vr(dr)}, {vr(t)}")
```

```python
from defs import *
K1_LDS = 163840
ABL = set()
NSSM = 160; NWO = 80

def gen_k1(name="k1_kernel"):
    a = Asm()
    VA = 4; VW = 8; VX = 12; VB = 16
    TB = 20; ABs = 32
    VST = 44
    PAR = 45
    AF = 48; WF = 64; SACC = 96; ACC = 128
    a("s_cmp_ge_u32 s2, 256")
    a("s_cbranch_scc1 .Lk1_end")
    for s, ka in ((4, 80), (8, 96), (12, 104), (16, 136), (20, 0), (24, 24), (28, 32), (40, 8), (44, 16), (48, 56), (64, 112), (68, 40), (72, 48)):
        srd(a, s, ka)
    a("v_lshrrev_b32 v1, 6, v0")
    a("v_readfirstlane_b32 s52, v1")
    a("v_and_b32 v0, 63, v0")
    a("s_and_b32 s53, s2, 7")
    a("s_lshl_b32 s53, s53, 2")
    a("s_bfe_u32 s55, s2, 0x20003")
    a("s_add_u32 s53, s53, s55")
    a("s_lshr_b32 s54, s2, 5")
    a("v_lshrrev_b32 v1, 4, v0")
    a("v_lshrrev_b32 v2, 3, v0")
    a("v_lshlrev_b32 v2, 10, v2")
    a("v_and_b32 v3, 7, v0")
    a("v_xor_b32 v3, v3, v1")
    a("v_lshl_add_u32 v2, v3, 4, v2")
    a("s_lshl_b32 s55, s54, 18")
    a("s_lshl_b32 s56, s52, 15")
    a("s_add_u32 s55, s55, s56")
    a(f"v_add_u32 v{VA}, s55, v2")
    a(f"v_xor_b32 v2, 64, v{VA}")
    a(f"v_add_u32 v{VA+1}, 7168, v2")
    a(f"v_add_u32 v{VA+2}, {2*7168}, v{VA}")
    a(f"v_add_u32 v{VA+3}, {3*7168}, v2")
    a("v_bfe_u32 v2, v0, 2, 2")
    a("v_xor_b32 v2, v2, v1")
    a("v_and_b32 v3, 3, v0")
    a("v_lshlrev_b32 v3, 4, v3")
    a("v_lshl_add_u32 v3, v2, 6, v3")
    a("v_lshl_add_u32 v2, v1, 13, v3")
    a("s_and_b32 s55, s52, 3")
    a("s_lshl_b32 s55, s55, 17")
    a("s_lshl_b32 s56, s53, 8")
    a("s_add_u32 s55, s55, s56")
    a(f"v_add_u32 v{VW}, s55, v2")
    for n in range(1, 4): a(f"v_add_u32 v{VW+n}, {n*31744}, v{VW}")
    a(f"v_lshlrev_b32 v{VST}, 4, v0")
    a("s_lshl_b32 s58, s52, 12")
    a("s_waitcnt lgkmcnt(0)")
    a("s_cmp_ge_u32 s52, 4")
    a("s_cselect_b32 s8, s12, s8"); a("s_cselect_b32 s9, s13, s9")
    srd_fin(a, 4, 2048 * 1024); srd_fin(a, 8, 4 << 20)
    def dma(q):
        slot = q % 5
        a(f"s_add_u32 m0, s58, {slot*32768}")
        if q < 16:
            s = q >> 1
            if q & 1 == 0:
                a(f"s_movk_i32 s56, {s*128}"); v, sd = VA, 4
            else:
                a(f"s_mov_b32 s56, {s*524288}"); v, sd = VW, 8
        else:
            s = (q - 16) >> 1
            a(f"s_movk_i32 s56, {s*256}")
            v, sd = (VX, 20) if q & 1 == 0 else (VB, 24)
        for n in range(4):
            if "nodma" in ABL: continue
            a(f"buffer_load_dwordx4 v{v+n}, s[{sd}:{sd+3}], s56 offen offset:{n*1024} lds", vm=("dma", q))
    for q in range(5): dma(q)
    a("s_mov_b32 s32, s16"); a("s_mov_b32 s33, s17"); a("s_mov_b32 s36, s16"); a("s_mov_b32 s37, s17")
    srd_fin(a, 16, 32 << 20, WS_KV)
    srd_fin(a, 36, EC_BYTES, WS_EC)
    srd_fin(a, 40, 1280); srd_fin(a, 44, 1280); srd_fin(a, 48, 1280)
    a("v_lshrrev_b32 v2, 5, v0")
    a("v_bfe_u32 v48, v0, 2, 2")
    a("v_lshl_add_u32 v2, v2, 3, v48")
    a("v_lshlrev_b32 v2, 8, v2")
    a("v_bfe_u32 v49, v0, 4, 1")
    a("v_lshl_add_u32 v2, v49, 5, v2")
    a("v_and_b32 v49, 3, v0")
    a("v_lshl_add_u32 v2, v49, 3, v2")
    a("s_lshr_b32 s55, s52, 2")
    a("s_lshl_b32 s55, s55, 14")
    a("v_add_u32 v2, s55, v2")
    for b in range(4):
        a(f"v_xor_b32 v49, {b}, v48")
        a(f"v_lshl_add_u32 v{TB+b}, v49, 6, v2")
    a("v_and_b32 v2, 31, v0")
    a("v_lshlrev_b32 v2, 7, v2")
    a("s_and_b32 s55, s52, 3")
    a("s_lshl_b32 s55, s55, 13")
    a("v_add_u32 v2, s55, v2")
    a("v_bfe_u32 v48, v0, 1, 3")
    a("v_lshrrev_b32 v49, 5, v0")
    a("v_xor_b32 v48, v48, v49")
    for ks in range(4):
        a(f"v_xor_b32 v49, {2*ks}, v48")
        a(f"v_lshl_add_u32 v{ABs+ks}, v49, 4, v2")
    for st in (1, 2):
        for j in range(4):
            a(f"v_add_u32 v{TB+4*st+j}, {st*65536}, v{TB+j}")
            a(f"v_add_u32 v{ABs+4*st+j}, {st*65536}, v{ABs+j}")
    a("s_lshl_b32 s59, s53, 6")
    a("s_lshl_b32 s55, s54, 3")
    a("s_add_u32 s59, s59, s55")
    a("s_and_b32 s55, s52, 3")
    a("s_lshl_b32 s55, s55, 1")
    a("s_add_u32 s59, s59, s55")
    a("s_lshl_b32 s59, s59, 14")
    a("s_lshr_b32 s55, s52, 2")
    a("s_lshl_b32 s55, s55, 13")
    a("s_add_u32 s59, s59, s55")
    a(f"s_cmp_ge_u32 s2, {NSSM}")
    a("s_cbranch_scc1 .Lk1_role2")
    a("s_mul_i32 s60, s2, 0xcccd")
    a("s_lshr_b32 s60, s60, 19")
    a("s_mul_i32 s61, s60, 10")
    a("s_sub_u32 s61, s2, s61")
    a("s_cmp_ge_u32 s52, 4")
    a("s_cselect_b32 s24, s28, s24"); a("s_cselect_b32 s25, s29, s25")
    srd_fin(a, 20, 2048 * 1280); srd_fin(a, 24, 640 * 1280)
    a("v_and_b32 v2, 15, v0")
    a("v_xor_b32 v2, v2, v1")
    a("v_mul_u32_u24 v3, 1280, v1")
    a("s_lshl_b32 s55, s60, 7")
    a("s_lshr_b32 s56, s52, 1")
    a("s_lshl_b32 s56, s56, 5")
    a("s_add_u32 s55, s55, s56")
    a("s_and_b32 s56, s52, 1")
    a("s_lshl_b32 s56, s56, 3")
    a("s_add_u32 s55, s55, s56")
    a("s_mul_i32 s55, s55, 1280")
    a("s_lshl_b32 s56, s61, 6")
    a("s_and_b32 s57, s52, 3")
    a("s_lshl_b32 s57, s57, 4")
    a("s_add_u32 s56, s56, s57")
    a("s_mul_i32 s56, s56, 1280")
    for n in range(4):
        a(f"v_xor_b32 v48, {4*n}, v2")
        a(f"v_lshl_add_u32 v48, v48, 4, v3")
        a(f"v_add_u32 v{VX+n}, s55, v48")
        a(f"v_add_u32 v{VB+n}, s56, v48")
        xo = (16 * (n & 1) + 4 * (n >> 1)) * 1280 - n * 1024
        bo = 4 * n * 1280 - n * 1024
        if xo: a(f"v_add_u32 v{VX+n}, {xo}, v{VX+n}")
        if bo: a(f"v_add_u32 v{VB+n}, {bo}, v{VB+n}")
    a("v_and_b32 v2, 31, v0")
    a("s_lshl_b32 s55, s61, 6")
    a("s_and_b32 s56, s52, 1")
    a("s_lshl_b32 s56, s56, 5")
    a("s_add_u32 s62, s55, s56")
    a("v_add_u32 v2, s62, v2")
    a("v_lshlrev_b32 v2, 1, v2")
    a("s_branch .Lk1_rolej")
    a.label(".Lk1_role2")
    a("s_mov_b32 s20, s64"); a("s_mov_b32 s21, s65"); a("s_mov_b32 s24, s64"); a("s_mov_b32 s25, s65")
    srd_fin(a, 20, 4096 * 1280); srd_fin(a, 24, 4096 * 1280)
    a(f"s_cmp_ge_u32 s2, {NSSM+NWO}")
    a("s_cselect_b32 s22, 0, s22"); a("s_cselect_b32 s26, 0, s26")
    a(f"s_sub_u32 s60, s2, {NSSM}")
    a("s_lshl_b32 s60, s60, 1")
    a("v_mul_u32_u24 v2, 1280, v1")
    a("v_add_u32 v2, v2, v3")
    a("s_mul_i32 s57, s52, 20480")
    for u, V, sh, sc in ((0, VX, 61, 62), (1, VB, 63, 76)):
        a(f"s_add_u32 s55, s60, {u}")
        a(f"s_mul_i32 s{sh}, s55, 0xcccd"); a(f"s_lshr_b32 s{sh}, s{sh}, 18")
        a(f"s_mul_i32 s56, s{sh}, 5"); a(f"s_sub_u32 s{sc}, s55, s56")
        a(f"s_mul_i32 s55, s{sh}, {128*1280}")
        a(f"s_lshl_b32 s56, s{sc}, 8")
        a("s_add_u32 s55, s55, s56"); a("s_add_u32 s55, s55, s57")
        for n in range(4):
            a(f"v_add_u32 v{V+n}, s55, v2")
            if n: a(f"v_add_u32 v{V+n}, {4*n*1280 - n*1024}, v{V+n}")
    a("v_mov_b32 v2, 0")
    a.label(".Lk1_rolej")
    a(f"buffer_load_ushort v{PAR}, v2, s[40:43], 0 offen", vm="par")
    a(f"buffer_load_ushort v{PAR+1}, v2, s[44:47], 0 offen", vm="par")
    a(f"buffer_load_ushort v{PAR+2}, v2, s[48:51], 0 offen", vm="par")

    def af(gs, r): return AF + ((gs & 1) * 2 + r) * 4
    def wf(gs, b): return WF + ((gs & 1) * 4 + b) * 4
    def rdA(gs, r):
        st = gs >> 2; ks = gs & 3; slot = (2 * st) % 5
        a(f"ds_read_b128 {vr(af(gs,r),4)}, v{ABs+4*(slot>>1)+ks} offset:{(slot&1)*32768 + r*4096}", lg=("a", gs, r))
    def rdW(gs, b):
        st = gs >> 2; ks = gs & 3; slot = (2 * st + 1) % 5
        for r2 in range(2):
            a(f"ds_read_b64_tr_b16 {vr(wf(gs,b)+2*r2,2)}, v{TB+4*(slot>>1)+b} offset:{(slot&1)*32768 + ks*4096 + r2*1024}", lg=("w", gs, b))
    def p1(m):
        def mfma(gs, b, r):
            acc = vr(ACC + 16 * (4 * r + b), 16); w = vr(wf(gs, b), 4); c = vr(af(gs, r), 4)
            srcc = "0" if gs == 0 else acc
            a.wait(lg=[("w", gs, b), ("a", gs, r)])
            if m == 0: a(f"v_mfma_f32_32x32x16_bf16 {acc}, {w}, {c}, {srcc}")
            else:      a(f"v_mfma_f32_32x32x16_bf16 {acc}, {c}, {w}, {srcc}")
        a.wait(vm=("dma", 1))
        a("s_barrier")
        a.c("@TS 0")
        rdA(0, 0); rdW(0, 0); rdA(0, 1); rdW(0, 1); rdW(0, 2); rdW(0, 3)
        for gs in range(32):
            st = gs >> 2; ks = gs & 3
            nxt = gs + 1 < 32
            plan = [lambda: rdA(gs + 1, 0), lambda: rdW(gs + 1, 0), lambda: rdA(gs + 1, 1), lambda: rdW(gs + 1, 1), lambda: rdW(gs + 1, 2), lambda: rdW(gs + 1, 3)] if nxt else []
            order = [(b, r) for b in range(4) for r in range(2)]
            if ks == 3:
                mfma(gs, 0, 0); mfma(gs, 0, 1)
                a("s_waitcnt lgkmcnt(0)")
                a.wait(vm=("dma", 2 * st + 3))
                a("s_barrier")
                for q in (2 * st + 5, 2 * st + 6):
                    if q <= 17: dma(q)
                for i, (b, r) in enumerate(order[2:]):
                    if i < len(plan): plan[i]()
                    mfma(gs, b, r)
            else:
                for i, (b, r) in enumerate(order):
                    mfma(gs, b, r)
                    if i < len(plan): plan[i]()
    a("s_cmp_ge_u32 s52, 4")
    a("s_cbranch_scc1 .Lk1_pv")
    st0 = (list(a.vm), list(a.lg))
    p1(0)
    a("s_branch .Lk1_p1done")
    st1 = (list(a.vm), list(a.lg))
    a.label(".Lk1_pv")
    a.vm, a.lg = list(st0[0]), list(st0[1])
    p1(1)
    assert (a.vm, a.lg) == st1
    a.label(".Lk1_p1done")
    a.c("@TS 1")
    def epi(r, b):
        R = ACC + 16 * (4 * r + b)
        for gp in range(2):
            for e in range(4):
                a(f"v_cvt_pk_bf16_f32 {vr(R+8*gp+e)}, {vr(R+8*gp+2*e)}, {vr(R+8*gp+2*e+1)}")
        for gp in range(2):
            o = r * 16384 + (2 * b + gp) * 1024
            if (o & 4095) == 0 or True:
                a(f"s_add_u32 s56, s59, {o & ~4095}")
            if "nost" not in ABL:
                a(f"buffer_store_dwordx4 {vr(R+8*gp,4)}, v{VST}, s[16:19], s56 offen offset:{o & 4095} {STORE_MOD}", vm="st")
    a(f"s_cmp_ge_u32 s2, {NSSM}")
    a("s_cbranch_scc1 .Lk1_other")
    st2 = (list(a.vm), list(a.lg))
    ssm(a, dma, epi, VST, PAR, AF, SACC)
    a("s_endpgm")
    a.label(".Lk1_other")
    a.vm, a.lg = st2
    for r in range(2):
        for b in range(4): epi(r, b)
    other(a, VST)
    a.label(".Lk1_end")
    a("s_endpgm")
    return kbegin(name) + a.text()

def ssm(a, dma, epi, VST, PAR, FR, SACC):
    SR = SACC; SI = SACC + 16
    dma(18); dma(19); dma(20)
    srd_fin(a, 32, HT_BYTES, WS_HT)
    XB0, BB0, XB, BB, T0 = 20, 21, 22, 23, 24
    a("v_and_b32 v2, 31, v0")
    a("v_and_b32 v3, 15, v0")
    a("v_lshrrev_b32 v1, 5, v0")
    a("v_xor_b32 v3, v3, v1")
    a("v_lshlrev_b32 v2, 8, v2")
    a("v_lshl_add_u32 v2, v3, 4, v2")
    a("s_lshr_b32 s55, s52, 1")
    a("s_lshl_b32 s55, s55, 13")
    a(f"v_add_u32 v{XB0}, s55, v2")
    a("s_and_b32 s55, s52, 1")
    a("s_lshl_b32 s55, s55, 13")
    a(f"v_add_u32 v{BB0}, s55, v2")
    D = 4
    def fr(j, k): return FR + ((j % D) * 3 + k) * 4
    def rd(j):
        st = j >> 3; s = j & 7
        if s == 0:
            a(f"v_add_u32 v{XB}, {((16+2*st)%5)*32768}, v{XB0}")
            a(f"v_add_u32 v{BB}, {((17+2*st)%5)*32768}, v{BB0}")
        t = T0 + 2 * (j % D)
        a(f"v_xor_b32 v{t}, {32*s}, v{XB}")
        a(f"v_xor_b32 v{t+1}, {32*s}, v{BB}")
        a(f"ds_read_b128 {vr(fr(j,0),4)}, v{t}", lg=("b", j))
        a(f"ds_read_b128 {vr(fr(j,1),4)}, v{t+1}", lg=("b", j))
        a(f"ds_read_b128 {vr(fr(j,2),4)}, v{t+1} offset:16384", lg=("b", j))
    def smf(j):
        a.wait(lg=("b", j))
        for part in range(2):
            acc = vr(SR if part == 0 else SI, 16)
            a(f"v_mfma_f32_32x32x16_bf16 {acc}, {vr(fr(j,0),4)}, {vr(fr(j,1+part),4)}, {'0' if j==0 else acc}")
    PD = 2
    for j in range(PD): rd(j)
    eps = [(r, b) for r in range(2) for b in range(4)]
    for j in range(40):
        s = j & 7; st = j >> 3
        smf(j)
        if s == 8 - PD and st < 4:
            a("s_waitcnt lgkmcnt(0)")
            a.wait(vm=("dma", 17 + 2 * (st + 1)))
            a("s_barrier")
            for q in (16 + 2 * st + 5, 16 + 2 * st + 6):
                if q <= 25: dma(q)
        if j + PD < 40: rd(j + PD)
        if j % 3 == 0 and eps: epi(*eps.pop(0))
    assert not eps
    a.c("@TS 2")
    T = 48
    Lr, Li, c2r, c2i, t0, t1, Er, Ei, P16r, P16i, Cr, Ci = range(T, T + 12)
    a.wait(vm="par")
    lam_params(a, PAR, PAR + 1, PAR + 2, Lr, Li, t0, t1, (c2r, c2i))
    a(f"v_mov_b32 {vr(P16r)}, {vr(Lr)}"); a(f"v_mov_b32 {vr(P16i)}, {vr(Li)}")
    for _ in range(4): csq(a, P16r, P16i, t0)
    def step(hr, hi, sr_, si_, outr, outi):
        a(f"v_fma_f32 {vr(t0)}, {vr(Lr)}, {vr(hr)}, {vr(sr_)}")
        a(f"v_fma_f32 {vr(t1)}, {vr(Lr)}, {vr(hi)}, {vr(si_)}")
        a(f"v_fma_f32 {vr(t0)}, -{vr(Li)}, {vr(hi)}, {vr(t0)}")
        a(f"v_fma_f32 {vr(outi)}, {vr(Li)}, {vr(hr)}, {vr(t1)}")
        a(f"v_mov_b32 {vr(outr)}, {vr(t0)}")
    a(f"v_mov_b32 {vr(Er)}, {vr(SR)}"); a(f"v_mov_b32 {vr(Ei)}, {vr(SI)}")
    for tau in range(1, 16): step(Er, Ei, SR + tau, SI + tau, Er, Ei)
    SG = T + 12; EA = T + 13; EX = T + 14
    a(f"v_lshrrev_b32 {vr(SG)}, 5, v0")
    a("s_lshr_b32 s55, s52, 1")
    a("s_lshl_b32 s55, s55, 1")
    a(f"v_add_u32 {vr(SG)}, s55, {vr(SG)}")
    a(f"v_and_b32 {vr(EA)}, 31, v0")
    a("s_and_b32 s55, s52, 1")
    a("s_lshl_b32 s55, s55, 5")
    a(f"v_add_u32 {vr(EA)}, s55, {vr(EA)}")
    a(f"v_lshlrev_b32 {vr(EA)}, 3, {vr(EA)}")
    a(f"v_add_u32 {vr(EA)}, 0x10000, {vr(EA)}")
    a(f"v_lshl_add_u32 {vr(t0)}, {vr(SG)}, 9, {vr(EA)}")
    a(f"ds_write_b64 {vr(t0)}, {vr(Er,2)}")
    a("s_waitcnt lgkmcnt(0)")
    a("s_barrier")
    for j in range(7):
        a(f"ds_read_b64 {vr(EX+2*j,2)}, {vr(EA)} offset:{j*512}")
    a(f"v_mov_b32 {vr(Cr)}, 0"); a(f"v_mov_b32 {vr(Ci)}, 0")
    a("s_waitcnt lgkmcnt(0)")
    for j in range(7):
        a(f"v_cmp_lt_u32 vcc, {j}, {vr(SG)}")
        a(f"v_fma_f32 {vr(t0)}, {vr(P16r)}, {vr(Cr)}, {vr(EX+2*j)}")
        a(f"v_fma_f32 {vr(t1)}, {vr(P16r)}, {vr(Ci)}, {vr(EX+2*j+1)}")
        a(f"v_fma_f32 {vr(t0)}, -{vr(P16i)}, {vr(Ci)}, {vr(t0)}")
        a(f"v_fma_f32 {vr(t1)}, {vr(P16i)}, {vr(Cr)}, {vr(t1)}")
        a(f"v_cndmask_b32 {vr(Cr)}, {vr(Cr)}, {vr(t0)}, vcc")
        a(f"v_cndmask_b32 {vr(Ci)}, {vr(Ci)}, {vr(t1)}, vcc")
    step(Cr, Ci, SR, SI, SR, SI)
    for tau in range(1, 16): step(SR + tau - 1, SI + tau - 1, SR + tau, SI + tau, SR + tau, SI + tau)
    OR_ = 4; OI = 20
    for tau in range(16):
        a(f"v_mul_f32 {vr(OR_+tau)}, {vr(c2r)}, {vr(SR+tau)}")
        a(f"v_mul_f32 {vr(OI+tau)}, {vr(c2r)}, {vr(SI+tau)}")
        a(f"v_fma_f32 {vr(OR_+tau)}, -{vr(c2i)}, {vr(SI+tau)}, {vr(OR_+tau)}")
        a(f"v_fma_f32 {vr(OI+tau)}, -{vr(c2i)}, {vr(SR+tau)}, -{vr(OI+tau)}")
    PR = 80; PI = 88
    for e in range(8):
        a(f"v_cvt_pk_bf16_f32 {vr(PR+e)}, {vr(OR_+2*e)}, {vr(OR_+2*e+1)}")
        a(f"v_cvt_pk_bf16_f32 {vr(PI+e)}, {vr(OI+2*e)}, {vr(OI+2*e+1)}")
    a("s_mul_i32 s55, s60, 20")
    a("s_lshr_b32 s56, s62, 5")
    a("s_add_u32 s55, s55, s56")
    a("s_lshl_b32 s55, s55, 2")
    a("s_lshr_b32 s56, s52, 1")
    a("s_add_u32 s55, s55, s56")
    a("s_lshl_b32 s55, s55, 12")
    for k, R in enumerate((PR, PR + 4, PI, PI + 4)):
        a(f"buffer_store_dwordx4 {vr(R,4)}, v{VST}, s[32:35], s55 offen offset:{k*1024} {STORE_MOD}")
    a("s_cmp_lt_u32 s52, 6")
    a("s_cbranch_scc1 .Lk1_ecdone")
    a(f"v_mov_b32 {vr(Er)}, {vr(OR_+15)}"); a(f"v_mov_b32 {vr(Ei)}, {vr(OI+15)}")
    a(f"v_and_b32 {vr(t0)}, 31, v0")
    a(f"v_lshlrev_b32 {vr(t0)}, 3, {vr(t0)}")
    a("s_mul_i32 s55, s60, 640")
    a("s_add_u32 s55, s55, s62")
    a("s_lshl_b32 s55, s55, 3")
    a("s_mov_b32 exec_lo, 0")
    a(f"buffer_store_dwordx2 {vr(Er,2)}, {vr(t0)}, s[36:39], s55 offen {STORE_MOD}")
    a.label(".Lk1_ecdone")

def other(a, VST):
    a(f"s_cmp_ge_u32 s2, {NSSM+NWO}")
    a("s_cbranch_scc1 .Lk1_crole")
    srd_fin(a, 32, WOF_BYTES, WS_WOF)
    a("v_lshrrev_b32 v2, 5, v0")
    a("v_bfe_u32 v3, v0, 4, 1")
    a("v_lshlrev_b32 v2, 4, v2")
    a("v_lshl_add_u32 v2, v3, 2, v2")
    a("v_bfe_u32 v3, v0, 2, 2")
    a("v_add_u32 v2, v2, v3")
    a("v_lshlrev_b32 v2, 8, v2")
    a("s_lshr_b32 s55, s52, 1")
    a("v_xor_b32 v3, s55, v3")
    a("v_lshl_add_u32 v2, v3, 6, v2")
    a("v_and_b32 v3, 3, v0")
    a("v_lshl_add_u32 v2, v3, 3, v2")
    a("s_and_b32 s55, s52, 1")
    a("s_lshl_b32 s55, s55, 5")
    a("s_add_u32 s55, s55, 32768")
    a("v_add_u32 v2, s55, v2")
    a("v_add_u32 v3, 32768, v2")
    for u, (sh, sc) in enumerate(((61, 62), (63, 76))):
        for kkl in range(4):
            R = 48 + (u * 4 + kkl) * 4
            a(f"ds_read_b64_tr_b16 {vr(R,2)}, v{2+u} offset:{kkl*8192}", lg=("wo", u))
            a(f"ds_read_b64_tr_b16 {vr(R+2,2)}, v{2+u} offset:{kkl*8192+2048}", lg=("wo", u))
    for u, (sh, sc) in enumerate(((61, 62), (63, 76))):
        a(f"s_lshl_b32 s55, s{sc}, 3"); a("s_add_u32 s55, s55, s52")
        a("s_mul_i32 s56, s55, 0xcccd"); a("s_lshr_b32 s56, s56, 18")
        a("s_mul_i32 s57, s56, 5"); a("s_sub_u32 s57, s55, s57")
        a("s_lshl_b32 s56, s56, 7")
        a(f"s_lshl_b32 s55, s{sh}, 2"); a("s_add_u32 s56, s56, s55")
        a("s_mul_i32 s56, s56, 5"); a("s_add_u32 s56, s56, s57")
        a("s_lshl_b32 s56, s56, 10")
        a.wait(lg=("wo", u))
        for kkl in range(4):
            R = 48 + (u * 4 + kkl) * 4
            a(f"buffer_store_dwordx4 {vr(R,4)}, v{VST}, s[32:35], s56 offen {STORE_MOD}")
            if kkl < 3: a("s_add_u32 s56, s56, 5120")
    a("s_endpgm")
    a.label(".Lk1_crole")
    srd_fin(a, 32, CF_BYTES, WS_CF)
    srd_fin(a, 68, 640 * 1280); srd_fin(a, 72, 640 * 1280)
    a("v_and_b32 v2, 15, v0")
    a("v_mul_u32_u24 v2, 1280, v2")
    a("v_lshrrev_b32 v3, 4, v0")
    a("v_lshl_add_u32 v2, v3, 4, v2")
    a(f"s_sub_u32 s60, s2, {NSSM+NWO}")
    a("s_lshl_b32 s60, s60, 3")
    a("s_add_u32 s60, s60, s52")
    a.label(".Lk1_cloop")
    a("s_mul_i32 s61, s60, 0xcccd"); a("s_lshr_b32 s61, s61, 21")
    a("s_mul_i32 s62, s61, 40"); a("s_sub_u32 s62, s60, s62")
    a("s_cmp_ge_u32 s62, 20")
    a("s_cselect_b32 s76, s72, s68"); a("s_cselect_b32 s77, s73, s69")
    a("s_mov_b32 s78, s70"); a("s_mov_b32 s79, s71")
    a("s_cselect_b32 s55, 20, 0")
    a("s_sub_u32 s62, s62, s55")
    a("s_lshl_b32 s62, s62, 6")
    a(f"s_mul_i32 s61, s61, {80*1280}")
    a("s_add_u32 s61, s61, s62")
    for r in range(5):
        a(f"buffer_load_dwordx4 {vr(48+4*r,4)}, v2, s[76:79], s61 offen")
        if r < 4: a(f"s_add_u32 s61, s61, {16*1280}")
    a("s_mul_i32 s62, s60, 5120")
    for r in range(5):
        a(f"s_waitcnt vmcnt({4})")
        a(f"buffer_store_dwordx4 {vr(48+4*r,4)}, v{VST}, s[32:35], s62 offen {STORE_MOD}")
        if r < 4: a("s_add_u32 s62, s62, 1024")
    a("s_add_u32 s60, s60, 128")
    a("s_cmp_lt_u32 s60, 320")
    a("s_cbranch_scc1 .Lk1_cloop")

if __name__ == "__main__":
    import sys
    for v in sys.argv[1:] + [""]:
        ABL.clear()
        if v: ABL.update(v.split("+"))
        s = header([("k1_kernel", 256, 512, K1_LDS)]) + gen_k1() + '.section .rodata,"a"\n' + kdesc("k1_kernel")
        open(f"k1_{v}.s" if v else "k1.s", "w").write(s)
```

```python
from defs import *
K2_LDS = 163840
ABL = set()
QSCALE = LOG2E / (128 ** 0.5)
THR = 65536.0
NEGBIG = -1.0e30
MISC = 131072

VKB, VL16, VD, VL = 1, 2, 3, 4
TMP = 5
VPS = 13; VT0 = 14; VT1 = 15
Q = 16; CM = 48; S = (64, 80); P = (96, 104); KF = 112; VF = 144; O = 176
VKO = 240; VKR = 241; VVT = 242
sW, sH, sI, sREM, sSVC, sGK, sLB, sFLOOR, sSITE, sT0, sT1, sT2, sQ0, sNG, sWL = 52, 53, 54, 55, 56, 57, 58, 59, 60, 61, 62, 63, 64, 65, 66

def gen_k2(name="k2_kernel"):
    a = Asm()
    a("s_cmp_ge_u32 s2, 256")
    a("s_cbranch_scc1 .Lk2_end")
    for s, ka in ((4, 72), (8, 88), (12, 136), (40, 8), (44, 16), (48, 56)):
        srd(a, s, ka)
    a("v_lshrrev_b32 v1, 6, v0")
    a(f"v_readfirstlane_b32 s{sW}, v1")
    a("v_and_b32 v0, 63, v0")
    a(f"s_and_b32 s{sH}, s2, 7")
    a(f"s_lshl_b32 s{sH}, s{sH}, 2")
    a(f"s_bfe_u32 s{sT0}, s2, 0x20003")
    a(f"s_add_u32 s{sH}, s{sH}, s{sT0}")
    a(f"s_lshr_b32 s{sI}, s2, 5")
    qproj(a)
    attention(a)
    a.label(".Lk2_end")
    a("s_endpgm")
    return kbegin(name) + a.text()

QSEQ = []
for s_ in range(10):
    QSEQ.append(("x", s_))
    if s_ % 2 == 0: QSEQ.append(("w", s_ // 2))
QIDX = {k: i for i, k in enumerate(QSEQ)}

def kv_dma(a, first=False):
    a(f"s_mov_b32 m0, s{sLB}")
    for n in range(4):
        a(f"buffer_load_dwordx4 v{VL16}, s[12:15], s{sGK} offen offset:{n*1024} lds", vm="kv")
    a(f"s_add_u32 m0, s{sLB}, 32768")
    a(f"s_sub_u32 s{sT0}, s{sGK}, {2*16384 - 8192}")
    for n in range(4):
        a(f"buffer_load_dwordx4 v{VL16}, s[12:15], s{sT0} offen offset:{n*1024} lds", vm="kv")
    a(f"s_add_u32 s{sGK}, s{sGK}, 65536")
    a(f"s_xor_b32 s{sLB}, s{sLB}, 65536")

def qproj(a):
    VX = 244; VW = 248
    XO = 48; XP = 60; TB = 72
    XF = KF; WF = KF + 16; ACC = O
    a("v_lshrrev_b32 v1, 4, v0")
    a(f"s_lshr_b32 s{sT0}, s{sW}, 1")
    a(f"s_sub_u32 s{sT1}, 15, s{sI}")
    a(f"s_lshl_b32 s{sT1}, s{sT1}, 2")
    a(f"s_add_u32 s{sT1}, s{sT1}, s{sT0}")
    a(f"s_lshl_b32 s{sT2}, s{sI}, 2")
    a(f"s_add_u32 s{sT2}, s{sT2}, 3")
    a(f"s_sub_u32 s{sT2}, s{sT2}, s{sT0}")
    a(f"s_bitcmp1_b32 s{sW}, 0")
    a(f"s_cselect_b32 s{sT1}, s{sT2}, s{sT1}")
    a(f"s_mul_i32 s{sT1}, s{sT1}, {32*1280}")
    a("v_lshrrev_b32 v2, 3, v0")
    a("v_mul_u32_u24 v2, 1280, v2")
    a("v_and_b32 v3, 7, v0")
    a("v_xor_b32 v3, v3, v1")
    a("v_lshl_add_u32 v2, v3, 4, v2")
    a(f"v_add_u32 v{VX}, s{sT1}, v2")
    a("v_xor_b32 v3, 4, v3")
    a("v_lshrrev_b32 v2, 3, v0")
    a("v_mul_u32_u24 v2, 1280, v2")
    a("v_lshl_add_u32 v2, v3, 4, v2")
    a(f"v_add_u32 v2, s{sT1}, v2")
    d = 8 * 1280 - 1024
    a(f"v_add_u32 v{VX+1}, {d}, v2")
    a(f"v_add_u32 v{VX+2}, {2*d}, v{VX}")
    a(f"v_add_u32 v{VX+3}, {3*d}, v2")
    a("v_bfe_u32 v2, v0, 2, 2")
    a("v_xor_b32 v2, v2, v1")
    a("v_and_b32 v3, 3, v0")
    a("v_lshlrev_b32 v3, 4, v3")
    a("v_lshl_add_u32 v3, v2, 6, v3")
    a("v_lshl_add_u32 v2, v1, 13, v3")
    a(f"s_lshl_b32 s{sT0}, s{sW}, 17")
    a(f"s_lshl_b32 s{sT1}, s{sH}, 8")
    a(f"s_add_u32 s{sT0}, s{sT0}, s{sT1}")
    a(f"v_add_u32 v{VW}, s{sT0}, v2")
    for n in range(1, 4): a(f"v_add_u32 v{VW+n}, {n*31744}, v{VW}")
    a(f"s_lshl_b32 s{sLB}, s{sW}, 12")
    a("s_waitcnt lgkmcnt(0)")
    srd_fin(a, 4, 2048 * 1280); srd_fin(a, 8, 640 * 8192)
    def dma(q):
        if q >= len(QSEQ): return
        kind, s = QSEQ[q]
        a(f"s_add_u32 m0, s{sLB}, {(q%5)*32768}")
        if kind == "x":
            a(f"s_movk_i32 s{sT0}, {s*128}"); v, sd = VX, 4
        else:
            a(f"s_mov_b32 s{sT0}, {s*1048576}"); v, sd = VW, 8
        for n in range(4):
            a(f"buffer_load_dwordx4 v{v+n}, s[{sd}:{sd+3}], s{sT0} offen offset:{n*1024} lds", vm=("dma", q))
    for q in range(5): dma(q)
    a("s_mov_b32 s16, s12"); a("s_mov_b32 s17, s13"); a("s_mov_b32 s20, s12"); a("s_mov_b32 s21, s13")
    a("s_mov_b32 s24, s12"); a("s_mov_b32 s25, s13"); a("s_mov_b32 s28, s12"); a("s_mov_b32 s29, s13")
    srd_fin(a, 12, 32 << 20, WS_KV)
    srd_fin(a, 16, CTX_BYTES, WS_CTX)
    srd_fin(a, 20, HT_BYTES, WS_HT)
    srd_fin(a, 24, EC_BYTES, WS_EC)
    srd_fin(a, 28, HTF_BYTES, WS_HTF)
    srd_fin(a, 40, 1280); srd_fin(a, 44, 1280); srd_fin(a, 48, 1280)
    a(f"s_and_b32 s{sWL}, s{sW}, 3")
    a("v_lshrrev_b32 v2, 5, v0")
    a("v_bfe_u32 v5, v0, 2, 2")
    a("v_lshl_add_u32 v2, v2, 3, v5")
    a("v_lshlrev_b32 v2, 8, v2")
    a("v_bfe_u32 v6, v0, 4, 1")
    a("v_lshl_add_u32 v2, v6, 5, v2")
    a("v_and_b32 v6, 3, v0")
    a("v_lshl_add_u32 v2, v6, 3, v2")
    a(f"s_lshr_b32 s{sT0}, s{sW}, 2")
    a(f"s_lshl_b32 s{sT0}, s{sT0}, 1")
    a(f"v_xor_b32 v5, s{sT0}, v5")
    for db in range(2):
        a(f"v_xor_b32 v6, {db}, v5")
        a(f"v_lshl_add_u32 v{TB+db}, v6, 6, v2")
    a("v_and_b32 v2, 31, v0")
    a("v_lshlrev_b32 v2, 7, v2")
    a(f"s_lshl_b32 s{sT0}, s{sWL}, 13")
    a(f"s_lshr_b32 s{sT1}, s{sW}, 2")
    a(f"s_lshl_b32 s{sT1}, s{sT1}, 12")
    a(f"s_add_u32 s{sT0}, s{sT0}, s{sT1}")
    a(f"v_add_u32 v2, s{sT0}, v2")
    a("v_bfe_u32 v5, v0, 1, 3")
    a("v_lshrrev_b32 v6, 5, v0")
    a("v_xor_b32 v5, v5, v6")
    for ks in range(4):
        a(f"v_xor_b32 v6, {2*ks}, v5")
        a(f"v_lshl_add_u32 v{XO+ks}, v6, 4, v2")
        a(f"v_xor_b32 v{XP+ks}, 4096, v{XO+ks}")
    for st in (1, 2):
        for j in range(4):
            a(f"v_add_u32 v{XO+4*st+j}, {st*65536}, v{XO+j}")
            a(f"v_add_u32 v{XP+4*st+j}, {st*65536}, v{XP+j}")
        for j in range(2):
            a(f"v_add_u32 v{TB+2*st+j}, {st*65536}, v{TB+j}")
    a(f"v_lshlrev_b32 v{VL16}, 4, v0")
    a(f"s_sub_u32 s{sT0}, 15, s{sI}")
    a(f"s_sub_u32 s{sT1}, 7, s{sW}")
    a(f"s_cmp_lt_u32 s{sW}, 4")
    a(f"s_cselect_b32 s{sT2}, s{sT0}, s{sI}")
    a(f"s_cselect_b32 s{sT1}, s{sW}, s{sT1}")
    a(f"s_lshl_b32 s{sREM}, s{sT2}, 2")
    a(f"s_add_u32 s{sREM}, s{sREM}, s{sT1}")
    a(f"s_lshl_b32 s{sQ0}, s{sREM}, 5")
    a(f"s_sub_u32 s{sSVC}, s{sT0}, s{sT2}")
    a(f"s_add_u32 s{sNG}, s{sT0}, 1")
    a(f"s_lshl_b32 s{sGK}, s{sH}, 6")
    a(f"s_lshr_b32 s{sT0}, s{sW}, 1")
    a(f"s_add_u32 s{sGK}, s{sGK}, s{sT0}")
    a(f"s_add_u32 s{sGK}, s{sGK}, 2")
    a(f"s_lshl_b32 s{sGK}, s{sGK}, 14")
    a(f"s_and_b32 s{sT0}, s{sW}, 1")
    a(f"s_lshl_b32 s{sT0}, s{sT0}, 12")
    a(f"s_add_u32 s{sGK}, s{sGK}, s{sT0}")

    def xf(gs, r): return XF + ((gs & 1) * 2 + r) * 4
    def wf(gs, b): return WF + ((gs & 1) * 2 + b) * 4
    def rdX(gs, r):
        st = gs >> 2; ks = gs & 3; slot = QIDX[("x", st)] % 5
        B = XO if r == 0 else XP
        a(f"ds_read_b128 {vr(xf(gs,r),4)}, v{B+4*(slot>>1)+ks} offset:{(slot&1)*32768}", lg=("a", gs, r))
    def rdW(gs, b):
        st = gs >> 2; ks = gs & 3; slot = QIDX[("w", st >> 1)] % 5
        for r2 in range(2):
            a(f"ds_read_b64_tr_b16 {vr(wf(gs,b)+2*r2,2)}, v{TB+2*(slot>>1)+b} offset:{(slot&1)*32768 + (st&1)*16384 + ks*4096 + r2*1024}", lg=("w", gs, b))
    def mfma(gs, b, r):
        acc = vr(ACC + 16 * (2 * r + b), 16)
        a.wait(lg=[("w", gs, b), ("a", gs, r)])
        a(f"v_mfma_f32_32x32x16_bf16 {acc}, {vr(wf(gs,b),4)}, {vr(xf(gs,r),4)}, {'0' if gs == 0 else acc}")
    a.wait(vm=("dma", 1))
    a("s_barrier")
    a.c("@TS 0")
    rdX(0, 0); rdW(0, 0); rdX(0, 1); rdW(0, 1)
    nq = 5
    for gs in range(40):
        st = gs >> 2; ks = gs & 3
        plan = [lambda: rdX(gs + 1, 0), lambda: rdW(gs + 1, 0), lambda: rdX(gs + 1, 1), lambda: rdW(gs + 1, 1)] if gs + 1 < 40 else []
        order = [(0, 0), (0, 1), (1, 0), (1, 1)]
        if ks == 3:
            mfma(gs, 0, 0)
            a("s_waitcnt lgkmcnt(0)")
            if st < 9:
                need = max(QIDX[("x", st + 1)], QIDX[("w", (st + 1) >> 1)])
                a.wait(vm=("dma", need))
            a("s_barrier")
            freed = [QIDX[("x", st)]] + ([QIDX[("w", st >> 1)]] if st & 1 else [])
            FREED.update(freed)
            while nq < len(QSEQ) and (nq - 5) in FREED:
                dma(nq); nq += 1
            if st == 7:
                kv_dma(a)
                a(f"s_sub_u32 s{sNG}, s{sNG}, 1")
            if st == 8:
                a(f"s_cmp_lt_u32 s{sW}, 4")
                a("s_cbranch_scc1 .Lk2_nog1")
                a(f"s_mov_b32 m0, s{sLB}")
                a(f"s_sub_u32 s{sT0}, s{sGK}, {2*65536}")
                for n in range(4):
                    a(f"buffer_load_dwordx4 v{VL16}, s[12:15], s{sT0} offen offset:{n*1024} lds")
                    a.vm.pop()
                a.label(".Lk2_nog1")
            for i, (b, r) in enumerate(order[1:]):
                for k in ((0, 1), (2,), (3,))[i]:
                    if k < len(plan): plan[k]()
                mfma(gs, b, r)
        else:
            for i, (b, r) in enumerate(order):
                mfma(gs, b, r)
                if i < len(plan): plan[i]()
    a.c("@TS 1")
    for r in (1, 0):
        for b in range(2):
            R = ACC + 16 * (2 * r + b)
            D_ = (Q if r == 0 else 96) + 8 * b
            for e in range(16): a(f"v_mul_f32 {vr(R+e)}, {f2u(QSCALE)}, {vr(R+e)}")
            for e in range(8): a(f"v_cvt_pk_bf16_f32 {vr(D_+e)}, {vr(R+2*e)}, {vr(R+2*e+1)}")
        if r == 1:
            a(f"s_lshl_b32 s{sT0}, s{sW}, 12")
            a(f"s_add_u32 s{sT0}, s{sT0}, {MISC}")
            a(f"v_add_u32 v5, s{sT0}, v{VL16}")
            for f in range(4): a(f"ds_write_b128 v5, {vr(96+4*f,4)} offset:{f*1024}")
            a("v_xor_b32 v5, 16384, v5")
    a("s_waitcnt vmcnt(0) lgkmcnt(0)")
    a("s_barrier")
    for f in range(4): a(f"ds_read_b128 {vr(Q+16+4*f,4)}, v5 offset:{f*1024}", lg="qx")
FREED = set()

def softmax_ops(par, half):
    ops = []
    Sr = S[par] + 8 * half; Pr = P[par] + 4 * half
    for e in range(0, 8, 2):
        t = TMP + (e % 8)
        ops.append(f"v_exp_f32 {vr(t)}, {vr(Sr+e)}")
        ops.append(f"v_exp_f32 {vr(t+1)}, {vr(Sr+e+1)}")
        if half == 0 and e == 0:
            ops.append(f"v_add_f32 {vr(VPS)}, {vr(t)}, {vr(t+1)}")
        else:
            ops.append(f"v_add_f32 {vr(VPS)}, {vr(VPS)}, {vr(t)}")
            ops.append(f"v_add_f32 {vr(VPS)}, {vr(VPS)}, {vr(t+1)}")
        ops.append(f"v_cvt_pk_bf16_f32 {vr(Pr+e//2)}, {vr(t)}, {vr(t+1)}")
    return ops

def spread(ops, nslots, skip0=0):
    out = [[] for _ in range(nslots)]
    n = nslots - skip0
    for i, o in enumerate(ops):
        out[skip0 + min(n - 1, i * n // len(ops))].append(o)
    return out

def attention(a):
    a(f"s_lshr_b32 s{sT0}, s{sW}, 2")
    a(f"s_lshl_b32 s{sT0}, s{sT0}, 12")
    a(f"s_add_u32 s{sT0}, s{sT0}, 65536")
    a(f"v_add_u32 v{VKO}, s{sT0}, v{VL16}")
    a(f"v_xor_b32 v{VKR}, 4096, v{VKO}")
    a(f"v_add_u32 v{VKB}, 65536, v{VL16}")
    def rdK(idx, s):
        B = VKO if s < 4 else VKR
        a(f"ds_read_b128 {vr(KF+4*s,4)}, v{B} offset:{idx*8192 + (s&3)*1024}", lg=("k", s))
    def rdV(j, f, base=VKB):
        off = 32768 + (j * 8192 if j is not None else 0) + f * 1024
        a(f"ds_read_b128 {vr(VF+4*f,4)}, v{base} offset:{off}", lg=("v", f))
    def qk(par, s):
        a.wait(lg=[("k", s), "qx"])
        a(f"v_mfma_f32_32x32x16_bf16 {vr(S[par],16)}, {vr(KF+4*s,4)}, {vr(Q+4*s,4)}, {vr(CM,16) if s == 0 else vr(S[par],16)}")
    def pv(par, t2, b):
        a.wait(lg=("v", 2 * b + t2))
        a(f"v_mfma_f32_32x32x16_bf16 {vr(O+16*b,16)}, {vr(VF+4*(2*b+t2),4)}, {vr(P[par]+4*t2,4)}, {vr(O+16*b,16)}")
    def toggle():
        for r in (VKO, VKR, VKB): a(f"v_xor_b32 v{r}, 0x10000, v{r}")
    for s in range(8): rdK(2, s)
    a(f"v_and_b32 v{VD}, 31, v0")
    a(f"v_lshrrev_b32 v5, 5, v0")
    a(f"v_lshlrev_b32 v5, 2, v5")
    a(f"v_sub_u32 v{VD}, v{VD}, v5")
    a(f"v_mov_b32 v{VL}, 0")
    for r in range(16): a(f"v_mov_b32 {vr(CM+r)}, 0")
    for r in range(64): a(f"v_mov_b32 {vr(O+r)}, 0")
    a(f"s_mov_b32 s{sFLOOR}, {f2u(NEGBIG)}")
    sites = []
    def mask_call(cond_val, site):
        a(f"s_cmp_lg_u32 s{sREM}, {cond_val}")
        a(f"s_cbranch_scc1 .Lk2_mr{site}")
        a(f"s_movk_i32 s{sSITE}, {site}")
        a("s_branch .Lk2_mask")
        a.label(f".Lk2_mr{site}")
        sites.append(site)
    fsites = {0: [], 1: []}
    def check(par, site, force=False):
        a(f"s_movk_i32 s{sSITE}, {site}")
        a(f"v_cmp_nlt_f32 vcc, {vr(VPS)}, {vr(VT0)}")
        a(f"s_cbranch_vccnz .Lk2_fb{par}")
        a.label(f".Lk2_fr{site}")
        a(f"v_add_f32 {vr(VL)}, {vr(VL)}, {vr(VPS)}")
        fsites[par].append(site)
    a(f"v_mov_b32 {vr(VT0)}, {f2u(NEGBIG)}")
    mask_call(0, 0)
    for s in range(8): qk(0, s)
    for s in range(8): rdK(3, s)
    for o in softmax_ops(0, 0): a(o)
    a("s_waitcnt vmcnt(0) lgkmcnt(0)")
    a("s_barrier")
    toggle()
    a(f"s_cmp_eq_u32 s{sNG}, 0")
    a("s_cbranch_scc1 .Lk2_loop")
    kv_dma(a)
    a(f"s_sub_u32 s{sNG}, s{sNG}, 1")
    a.label(".Lk2_loop")
    a.vm = []; a.lg = []
    for j in range(4):
        par = j & 1
        a(f"s_cmp_eq_u32 s{sREM}, {j}")
        a(f"s_cbranch_scc1 .Lk2_exit{j}")
        mask_call(j + 1, 1 + j)
        sm = spread(softmax_ops(par, 1), 8)
        for s in range(8):
            qk(par ^ 1, s)
            if s < 4:
                rdV(j, 2 * s); rdV(j, 2 * s + 1)
            for o in sm[s]: a(o)
        check(par, 10 + j)
        sm = spread(softmax_ops(par ^ 1, 0), 8, skip0=1)
        order = [(t2, b) for t2 in range(2) for b in range(4)]
        for i, (t2, b) in enumerate(order):
            pv(par, t2, b)
            if i < 4:
                rdK(j, 2 * i); rdK(j, 2 * i + 1)
            if j == 3 and i == 6:
                a("s_waitcnt vmcnt(0) lgkmcnt(0)")
                a("s_barrier")
                toggle()
                a(f"s_cmp_eq_u32 s{sNG}, 0")
                a("s_cbranch_scc1 .Lk2_nodma")
                kv_dma(a)
                a(f"s_sub_u32 s{sNG}, s{sNG}, 1")
                a.label(".Lk2_nodma")
            for o in sm[i]: a(o)
    a(f"s_sub_u32 s{sREM}, s{sREM}, 4")
    a("s_branch .Lk2_loop")
    for j in range(4):
        a.label(f".Lk2_exit{j}")
        a(f"v_add_u32 v{VVT}, {j*8192}, v{VKB}")
        a(f"s_branch .Lk2_tail{j&1}")
    for par in range(2):
        a.label(f".Lk2_tail{par}")
        a.vm = []; a.lg = []
        for f in range(8): rdV(None, f, VVT)
        for o in softmax_ops(par, 1): a(o)
        check(par, 20 + par)
        for t2 in range(2):
            for b in range(4): pv(par, t2, b)
        if par == 0: a("s_branch .Lk2_done")
    a.label(".Lk2_done")
    a.c("@TS 2")
    finish(a)
    a("s_endpgm")
    a.label(".Lk2_mask")
    a(f"v_mov_b32 {vr(VT1)}, {f2u(NEGBIG)}")
    for r in range(16):
        kv = 8 * (r >> 2) + (r & 3)
        a(f"v_cmp_gt_i32 vcc, {kv}, v{VD}")
        a(f"v_cndmask_b32 {vr(CM+r)}, {vr(CM+r)}, {vr(VT1)}, vcc")
    for st in sites:
        a(f"s_cmp_eq_u32 s{sSITE}, {st}")
        a(f"s_cbranch_scc1 .Lk2_mr{st}")
    a("s_endpgm")
    for par in range(2):
        a.label(f".Lk2_fb{par}")
        a("s_nop 15"); a("s_nop 15")
        Sr = S[par]; So = S[par ^ 1]
        mx = TMP; dl = TMP + 1; sc = TMP + 2
        a(f"v_max3_f32 {vr(mx)}, {vr(Sr)}, {vr(Sr+1)}, {vr(Sr+2)}")
        for r in range(3, 15, 2): a(f"v_max3_f32 {vr(mx)}, {vr(mx)}, {vr(Sr+r)}, {vr(Sr+r+1)}")
        a(f"v_max_f32 {vr(mx)}, {vr(mx)}, {vr(Sr+15)}")
        a(f"v_mov_b32 {vr(dl)}, {vr(mx)}")
        a("s_nop 1")
        a(f"v_permlane32_swap_b32 {vr(dl)}, {vr(mx)}")
        a("s_nop 1")
        a(f"v_max_f32 {vr(mx)}, {vr(mx)}, {vr(dl)}")
        a(f"v_max_f32 {vr(dl)}, s{sFLOOR}, {vr(mx)}")
        a(f"v_max_f32 {vr(sc)}, 0, {vr(dl)}")
        a(f"v_exp_f32 {vr(sc)}, -{vr(sc)}")
        for r in range(16):
            a(f"v_sub_f32 {vr(Sr+r)}, {vr(Sr+r)}, {vr(dl)}")
            a(f"v_sub_f32 {vr(So+r)}, {vr(So+r)}, {vr(dl)}")
            a(f"v_sub_f32 {vr(CM+r)}, {vr(CM+r)}, {vr(dl)}")
        for r in range(64): a(f"v_mul_f32 {vr(O+r)}, {vr(O+r)}, {vr(sc)}")
        a(f"v_mul_f32 {vr(VL)}, {vr(VL)}, {vr(sc)}")
        for h_ in range(2):
            for o in softmax_ops(par, h_): a(o)
        a(f"s_mov_b32 s{sFLOOR}, 0")
        a(f"v_mov_b32 {vr(VT0)}, {f2u(THR)}")
        a("s_nop 1")
        for st in fsites[par]:
            a(f"s_cmp_eq_u32 s{sSITE}, {st}")
            a(f"s_cbranch_scc1 .Lk2_fr{st}")
        a("s_endpgm")

SVCN = [0]
def svc(a):
    SVCN[0] += 1; k = SVCN[0]
    a(f"s_cmp_eq_u32 s{sSVC}, 0")
    a(f"s_cbranch_scc1 .Lk2_sv{k}")
    a("s_waitcnt vmcnt(0)")
    a("s_barrier")
    a(f"s_sub_u32 s{sSVC}, s{sSVC}, 1")
    a(f"s_cmp_eq_u32 s{sNG}, 0")
    a(f"s_cbranch_scc1 .Lk2_sv{k}")
    kv_dma(a)
    a(f"s_sub_u32 s{sNG}, s{sNG}, 1")
    a.label(f".Lk2_sv{k}")
    a.vm = ["?"] * 8 + []

def finish(a):
    svc(a)
    a(f"v_mov_b32 {vr(TMP)}, {vr(VL)}")
    a("s_nop 1")
    a(f"v_permlane32_swap_b32 {vr(TMP)}, {vr(VL)}")
    a("s_nop 1")
    a(f"v_add_f32 {vr(VL)}, {vr(VL)}, {vr(TMP)}")
    a(f"v_rcp_f32 {vr(VL)}, {vr(VL)}")
    a(f"v_bfe_u32 v5, v0, 4, 1")
    a(f"v_lshlrev_b32 v5, 10, v5")
    a(f"v_lshrrev_b32 v6, 5, v0")
    a(f"v_lshl_add_u32 v5, v6, 8, v5")
    a(f"v_and_b32 v6, 15, v0")
    a(f"v_lshl_add_u32 v5, v6, 4, v5")
    a(f"s_lshr_b32 s{sT0}, s{sQ0}, 6")
    a(f"s_lshl_b32 s{sT0}, s{sT0}, 7")
    a(f"s_lshl_b32 s{sT1}, s{sH}, 2")
    a(f"s_add_u32 s{sT0}, s{sT0}, s{sT1}")
    a(f"s_lshl_b32 s{sT0}, s{sT0}, 2")
    a(f"s_bfe_u32 s{sT1}, s{sQ0}, 0x10005")
    a(f"s_lshl_b32 s{sT1}, s{sT1}, 1")
    a(f"s_add_u32 s{sT0}, s{sT0}, s{sT1}")
    a(f"s_lshl_b32 s{sT0}, s{sT0}, 10")
    for b in range(4):
        R = O + 16 * b
        for e in range(16): a(f"v_mul_f32 {vr(R+e)}, {vr(R+e)}, {vr(VL)}")
        for e in range(8): a(f"v_cvt_pk_bf16_f32 {vr(R+e)}, {vr(R+2*e)}, {vr(R+2*e+1)}")
        for gp in range(2):
            a(f"buffer_store_dwordx4 {vr(R+4*gp,4)}, v5, s[16:19], s{sT0} offen offset:{gp*512} {STORE_MOD}")
        if b < 3: a(f"s_add_u32 s{sT0}, s{sT0}, 4096")
    a(f"s_cmp_lt_u32 s{sW}, 4")
    a("s_cbranch_scc1 .Lk2_svloop")
    a("s_cmp_ge_u32 s2, 160")
    a("s_cbranch_scc1 .Lk2_svloop")
    fixup(a)
    a.label(".Lk2_svloop")
    a(f"s_cmp_eq_u32 s{sSVC}, 0")
    a("s_cbranch_scc1 .Lk2_fin")
    svc(a)
    a("s_branch .Lk2_svloop")
    a.label(".Lk2_fin")

def fixup(a):
    sC, sPB, sTH = 70, 71, 72
    a(f"s_lshl_b32 s{sT0}, s2, 2")
    a(f"s_add_u32 s{sT0}, s{sT0}, s{sWL}")
    a(f"s_mul_i32 s{sC}, s{sT0}, 0xcccd"); a(f"s_lshr_b32 s{sC}, s{sC}, 21")
    a(f"s_mul_i32 s{sT1}, s{sC}, 40"); a(f"s_sub_u32 s{sT1}, s{sT0}, s{sT1}")
    a(f"s_lshr_b32 s{sPB}, s{sT1}, 1"); a(f"s_and_b32 s{sTH}, s{sT1}, 1")
    PAR = 16; EC = 20; HT = 64
    Lr, Li, t0, t1, Ar, Ai, Gr, Gi, M16r, M16i, M32r, M32i, M64r, M64i = range(100, 114)
    a("v_and_b32 v6, 31, v0")
    a(f"s_lshl_b32 s{sT0}, s{sPB}, 5")
    a(f"v_add_u32 v6, s{sT0}, v6")
    a("v_lshlrev_b32 v7, 1, v6")
    a("v_lshlrev_b32 v6, 3, v6")
    a(f"buffer_load_ushort v{PAR}, v7, s[40:43], 0 offen")
    a(f"buffer_load_ushort v{PAR+1}, v7, s[44:47], 0 offen")
    a(f"buffer_load_ushort v{PAR+2}, v7, s[48:51], 0 offen")
    for c in range(15):
        a(f"s_movk_i32 s{sT0}, {c*5120}" if c * 5120 < 32768 else f"s_mov_b32 s{sT0}, {c*5120}")
        a(f"buffer_load_dwordx2 {vr(EC+2*c,2)}, v6, s[24:27], s{sT0} offen")
    a(f"s_mul_i32 s{sT0}, s{sC}, 20"); a(f"s_add_u32 s{sT0}, s{sT0}, s{sPB}")
    a(f"s_lshl_b32 s{sT0}, s{sT0}, 1"); a(f"s_add_u32 s{sT0}, s{sT0}, s{sTH}")
    a(f"s_lshl_b32 s{sT0}, s{sT0}, 13")
    for k in range(2):
        for f in range(4):
            a(f"buffer_load_dwordx4 {vr(HT+16*k+4*f,4)}, v{VL16}, s[20:23], s{sT0} offen offset:{f*1024}")
        if k == 0: a(f"s_add_u32 s{sT0}, s{sT0}, 4096")
    svc(a)
    a("s_waitcnt vmcnt(8)")
    lam_params(a, PAR, PAR + 1, PAR + 2, Lr, Li, t0, t1)
    a(f"v_xor_b32 {vr(Li)}, 0x80000000, {vr(Li)}")
    a(f"v_mov_b32 {vr(Ar)}, {vr(Lr)}"); a(f"v_mov_b32 {vr(Ai)}, {vr(Li)}")
    for k in range(7):
        csq(a, Ar, Ai, t0)
        for kk, (r, i) in ((3, (M16r, M16i)), (4, (M32r, M32i)), (5, (M64r, M64i))):
            if k == kk:
                a(f"v_mov_b32 {vr(r)}, {vr(Ar)}"); a(f"v_mov_b32 {vr(i)}, {vr(Ai)}")
    a(f"v_mov_b32 {vr(Gr)}, 0"); a(f"v_mov_b32 {vr(Gi)}, 0")
    for c in range(15):
        a(f"s_cmp_le_u32 s{sC}, {c}")
        a("s_cbranch_scc1 .Lk2_hdone")
        a(f"v_fma_f32 {vr(t0)}, {vr(Ar)}, {vr(Gr)}, {vr(EC+2*c)}")
        a(f"v_fma_f32 {vr(t1)}, {vr(Ar)}, {vr(Gi)}, {vr(EC+2*c+1)}")
        a(f"v_fma_f32 {vr(t0)}, -{vr(Ai)}, {vr(Gi)}, {vr(t0)}")
        a(f"v_fma_f32 {vr(Gi)}, {vr(Ai)}, {vr(Gr)}, {vr(t1)}")
        a(f"v_mov_b32 {vr(Gr)}, {vr(t0)}")
    a.label(".Lk2_hdone")
    cmul(a, Gr, Gi, Gr, Gi, Lr, Li, t0)
    a("v_cmp_gt_u32 vcc, 32, v0")
    a(f"v_cndmask_b32 {vr(M16r)}, {vr(M16r)}, 1.0, vcc")
    a(f"v_cndmask_b32 {vr(M16i)}, {vr(M16i)}, 0, vcc")
    cmul(a, Gr, Gi, Gr, Gi, M16r, M16i, t0)
    a(f"s_cmp_eq_u32 s{sTH}, 0")
    a("s_cbranch_scc1 .Lk2_th0")
    cmul(a, Gr, Gi, Gr, Gi, M64r, M64i, t0)
    a.label(".Lk2_th0")
    cmul(a, Ar, Ai, Gr, Gi, M32r, M32i, t0)
    a("v_and_b32 v6, 31, v0")
    a("v_lshlrev_b32 v6, 7, v6")
    a("v_lshrrev_b32 v7, 5, v0")
    a("v_lshl_add_u32 v6, v7, 5, v6")
    a(f"s_lshl_b32 s{sT0}, s{sWL}, 13")
    a(f"s_add_u32 s{sT0}, s{sT0}, {MISC}")
    a(f"v_add_u32 v6, s{sT0}, v6")
    X = 20
    for k, (gr, gi) in enumerate(((Gr, Gi), (Ar, Ai))):
        svc(a)
        for e in range(8):
            hr = HT + 16 * k + e; hi = HT + 16 * k + 8 + e
            a(f"v_lshlrev_b32 v{X}, 16, {vr(hr)}")
            a(f"v_lshlrev_b32 v{X+1}, 16, {vr(hi)}")
            a(f"v_add_f32 v{X}, v{X}, {vr(gr)}")
            a(f"v_add_f32 v{X+1}, v{X+1}, {vr(gi)}")
            cmul(a, gr, gi, gr, gi, Lr, Li, t0)
            a(f"v_and_b32 v{X+2}, 0xffff0000, {vr(hr)}")
            a(f"v_and_b32 v{X+3}, 0xffff0000, {vr(hi)}")
            a(f"v_add_f32 v{X+2}, v{X+2}, {vr(gr)}")
            a(f"v_add_f32 v{X+3}, v{X+3}, {vr(gi)}")
            if e < 7: cmul(a, gr, gi, gr, gi, Lr, Li, t0)
            a(f"v_cvt_pk_bf16_f32 {vr(hr)}, v{X}, v{X+2}")
            a(f"v_cvt_pk_bf16_f32 {vr(hi)}, v{X+1}, v{X+3}")
        for f in range(4):
            part = f >> 1; n = f & 1
            a(f"ds_write_b128 v6, {vr(HT+16*k+4*f,4)} offset:{part*4096 + k*64 + n*16}")
    a("v_lshrrev_b32 v6, 4, v0")
    a("v_bfe_u32 v7, v0, 2, 2")
    a("v_lshl_add_u32 v6, v6, 3, v7")
    a("v_lshlrev_b32 v6, 7, v6")
    a("v_and_b32 v7, 3, v0")
    a("v_lshl_add_u32 v6, v7, 3, v6")
    a(f"s_lshl_b32 s{sT0}, s{sWL}, 13")
    a(f"s_add_u32 s{sT0}, s{sT0}, {MISC}")
    a(f"v_add_u32 v6, s{sT0}, v6")
    a("s_waitcnt lgkmcnt(0)")
    for part in range(2):
        for rb in range(4):
            R = HT + 16 * part + 4 * rb
            a(f"ds_read_b64_tr_b16 {vr(R,2)}, v6 offset:{part*4096 + rb*32}")
            a(f"ds_read_b64_tr_b16 {vr(R+2,2)}, v6 offset:{part*4096 + rb*32 + 512}")
    a(f"s_lshl_b32 s{sT0}, s{sC}, 1"); a(f"s_add_u32 s{sT0}, s{sT0}, s{sTH}")
    a(f"s_mul_i32 s{sT0}, s{sT0}, 40"); a(f"s_add_u32 s{sT0}, s{sT0}, s{sPB}")
    a(f"s_lshl_b32 s{sT0}, s{sT0}, 12")
    a(f"s_add_u32 s{sT1}, s{sT0}, {20*4096}")
    a("s_waitcnt lgkmcnt(0)")
    for part in range(2):
        for rb in range(4):
            R = HT + 16 * part + 4 * rb
            a(f"buffer_store_dwordx4 {vr(R,4)}, v{VL16}, s[28:31], s{sT0 if part == 0 else sT1} offen offset:{rb*1024} {STORE_MOD}")

if __name__ == "__main__":
    import k1
    s = header([("k1_kernel", 256, 512, k1.K1_LDS), ("k2_kernel", 256, 512, K2_LDS)]) + k1.gen_k1() + gen_k2() + '.section .rodata,"a"\n' + kdesc("k1_kernel") + kdesc("k2_kernel")
    open("k12.s", "w").write(s)
```

```python
from defs import *
K3_LDS = 163840
OUT_BYTES = 2048 * 1280 * 4

def gen_k3(name="k3_kernel"):
    a = Asm()
    a("s_cmp_ge_u32 s2, 256")
    a("s_cbranch_scc1 .Lk3_end")
    for s, ka in ((4, 136), (20, 120), (24, 0), (28, 64)):
        srd(a, s, ka)
    sW, sRB, sCB, sA, sB, sT0, sT1, sYA, sYB = 52, 53, 54, 55, 56, 57, 58, 59, 60
    VL16, VL16B, VO, VO2, VLR, VLR2 = 1, 2, 3, 4, 5, 6
    XD = 8
    T = 20
    FB = 52
    AC = 160
    a("v_lshrrev_b32 v1, 6, v0")
    a(f"v_readfirstlane_b32 s{sW}, v1")
    a("v_and_b32 v0, 63, v0")
    a(f"s_bfe_u32 s{sRB}, s2, 0x20001")
    a(f"s_lshl_b32 s{sRB}, s{sRB}, 3")
    a(f"s_bfe_u32 s{sT0}, s2, 0x30003")
    a(f"s_add_u32 s{sRB}, s{sRB}, s{sT0}")
    a(f"s_and_b32 s{sCB}, s2, 1")
    a(f"s_lshl_b32 s{sCB}, s{sCB}, 2")
    a(f"s_lshr_b32 s{sT0}, s2, 6")
    a(f"s_add_u32 s{sCB}, s{sCB}, s{sT0}")
    a(f"v_lshlrev_b32 v{VL16}, 4, v0")
    a(f"v_add_u32 v{VL16B}, 1024, v{VL16}")
    a(f"s_mul_i32 s{sT0}, s{sW}, 5")
    a(f"s_mul_i32 s{sYA}, s{sRB}, 40"); a(f"s_add_u32 s{sYA}, s{sYA}, s{sT0}"); a(f"s_lshl_b32 s{sYA}, s{sYA}, 12")
    a(f"s_mul_i32 s{sYB}, s{sCB}, 40"); a(f"s_add_u32 s{sYB}, s{sYB}, s{sT0}"); a(f"s_mul_i32 s{sYB}, s{sYB}, 5120")
    a(f"s_lshl_b32 s{sT0}, s{sW}, 4")
    a(f"s_lshl_b32 s{sA}, s{sRB}, 7"); a(f"s_add_u32 s{sA}, s{sA}, s{sT0}"); a(f"s_lshl_b32 s{sA}, s{sA}, 12")
    a(f"s_lshl_b32 s{sB}, s{sCB}, 7"); a(f"s_add_u32 s{sB}, s{sB}, s{sT0}"); a(f"s_mul_i32 s{sB}, s{sB}, 5120")
    a("s_waitcnt lgkmcnt(0)")
    for d in (8, 12, 16):
        a(f"s_mov_b32 s{d}, s4"); a(f"s_mov_b32 s{d+1}, s5")
    srd_fin(a, 4, HTF_BYTES, WS_HTF); srd_fin(a, 8, CF_BYTES, WS_CF)
    srd_fin(a, 12, CTX_BYTES, WS_CTX); srd_fin(a, 16, WOF_BYTES, WS_WOF)
    NS = 21
    def fa(st, i): return FB + 36 * (st % 3) + 4 * i
    def fb(st, i): return FB + 36 * (st % 3) + 16 + 4 * i
    def ld(st, idx):
        if st >= NS: return
        y = st < 5
        sa, sb = (sYA, sYB) if y else (sA, sB)
        ra, rbs = ("s[4:7]", "s[8:11]") if y else ("s[12:15]", "s[16:19]")
        if idx == 0:
            a(f"buffer_load_dwordx4 {vr(fb(st,0),4)}, v{VL16}, {rbs}, s{sb} offen", vm=("b", st, 0))
        elif idx <= 4:
            i = idx - 1
            a(f"buffer_load_dwordx4 {vr(fa(st,i),4)}, v{VL16}, {ra}, s{sa} offen offset:{i*1024}", vm=("a", st, i))
            if i == 3: a(f"s_add_u32 s{sa}, s{sa}, 4096")
        else:
            i = idx - 4
            a(f"buffer_load_dwordx4 {vr(fb(st,i),4)}, v{VL16B}, {rbs}, s{sb} offen offset:{(i-1)*1024}", vm=("b", st, i))
            if i == 4: a(f"s_add_u32 s{sb}, s{sb}, 5120")
    for st in range(3):
        for i in range(9): ld(st, i)
    srd_fin(a, 20, OUT_BYTES); srd_fin(a, 24, 2048 * 1280); srd_fin(a, 28, 1280)
    a("v_and_b32 v7, 15, v0")
    a(f"v_mul_u32_u24 v{VO}, 5120, v7")
    a(f"v_mul_u32_u24 v{VO2}, 1280, v7")
    a("v_lshrrev_b32 v7, 4, v0")
    a(f"v_lshl_add_u32 v{VO}, v7, 4, v{VO}")
    a(f"v_lshl_add_u32 v{VO2}, v7, 3, v{VO2}")
    a(f"v_lshlrev_b32 v7, 3, v7")
    sO = (61, 62, 63)
    for j in range(3):
        if j == 0: a(f"s_mov_b32 s{sT0}, s{sW}")
        elif j == 1: a(f"s_add_u32 s{sT0}, s{sW}, 8")
        else:
            a(f"s_lshr_b32 s{sT0}, s{sW}, 1"); a(f"s_add_u32 s{sT0}, s{sT0}, 16")
        a(f"s_mul_i32 s{sT1}, s{sT0}, 0xcccd"); a(f"s_lshr_b32 s{sT1}, s{sT1}, 18")
        a(f"s_mul_i32 s64, s{sT1}, 5"); a(f"s_sub_u32 s{sT0}, s{sT0}, s64")
        a(f"s_lshl_b32 s64, s{sRB}, 2"); a(f"s_add_u32 s{sT1}, s{sT1}, s64")
        a(f"s_mul_i32 s64, s{sCB}, 5"); a(f"s_add_u32 s{sT0}, s{sT0}, s64")
        a(f"s_mul_i32 s{sO[j]}, s{sT1}, {16*5120}")
        a(f"s_lshl_b32 s64, s{sT0}, 6"); a(f"s_add_u32 s{sO[j]}, s{sO[j]}, s64")
        a(f"s_mul_i32 s65, s{sT1}, {16*1280}")
        a(f"s_lshl_b32 s64, s{sT0}, 5"); a(f"s_add_u32 s65, s65, s64")
        a(f"buffer_load_dwordx2 {vr(XD+2*j,2)}, v{VO2}, s[24:27], s65 offen", vm="xd")
        a(f"buffer_load_dwordx2 {vr(XD+6+2*j,2)}, v7, s[28:31], s64 offen", vm="xd")
    VW = 7
    a(f"s_mul_i32 s{sT0}, s{sW}, 20480")
    a(f"s_lshl_b32 s{sT1}, s{sW}, 10")
    a(f"v_add_u32 v{VLR}, s{sT1}, v{VL16}")
    a(f"s_lshr_b32 s{sT1}, s{sW}, 1"); a(f"s_lshl_b32 s{sT1}, s{sT1}, 10"); a(f"s_add_u32 s{sT1}, s{sT1}, 16384")
    a(f"v_add_u32 v{VLR2}, s{sT1}, v{VL16}")
    a(f"s_bitcmp1_b32 s{sW}, 0")
    a("s_cselect_b32 s66, 0, -1")
    a("s_cselect_b32 s67, -1, 0")
    a("s_nop 4")
    a(f"v_add_u32 v{VW}, s{sT0}, v{VL16}")
    V2 = 240
    for k, (base, src) in enumerate(((VLR, VLR), (VLR2, VLR2))):
        a(f"v_add_u32 v{V2+2*k}, 61440, v{src}")
        a(f"v_add_u32 v{V2+2*k+1}, 122880, v{src}")
    def rd_item(j, tag):
        for s in range(8):
            seg = s // 3
            basev = (VLR if j < 2 else VLR2) if seg == 0 else V2 + (0 if j < 2 else 2) + seg - 1
            off = (s % 3) * 20480 + (8192 if j == 1 else 0)
            a(f"ds_read_b128 {vr(T+4*s,4)}, v{basev} offset:{off}", lg=(tag, j, s))
    def red_ops(j, tag, y):
        ops = []
        for s in range(1, 8):
            def f(s=s):
                a.wait(lg=[(tag, j, s), (tag, j, 0)])
                for r in range(4): a(f"v_add_f32 {vr(T+r)}, {vr(T+r)}, {vr(T+4*s+r)}")
            ops.append(f)
        def fin():
            if y:
                a.wait(vm="xd")
                x0, x1 = XD + 2 * j, XD + 2 * j + 1; d0, d1 = XD + 6 + 2 * j, XD + 7 + 2 * j
                t = T + 4
                for k, (x, d) in enumerate(((x0, d0), (x1, d1))):
                    a(f"v_lshlrev_b32 {vr(t)}, 16, {vr(x)}"); a(f"v_lshlrev_b32 {vr(t+1)}, 16, {vr(d)}")
                    a(f"v_and_b32 {vr(t+2)}, 0xffff0000, {vr(x)}"); a(f"v_and_b32 {vr(t+3)}, 0xffff0000, {vr(d)}")
                    a(f"v_mul_f32 {vr(t)}, {vr(t)}, {vr(t+1)}"); a(f"v_mul_f32 {vr(t+2)}, {vr(t+2)}, {vr(t+3)}")
                    a(f"v_cvt_pk_bf16_f32 {vr(t)}, {vr(t)}, {vr(t+2)}")
                    a(f"v_lshlrev_b32 {vr(t+1)}, 16, {vr(t)}"); a(f"v_and_b32 {vr(t)}, 0xffff0000, {vr(t)}")
                    a(f"v_add_f32 {vr(T+2*k)}, {vr(T+2*k)}, {vr(t+1)}"); a(f"v_add_f32 {vr(T+2*k+1)}, {vr(T+2*k+1)}, {vr(t)}")
            if j == 2: a("s_mov_b64 exec, s[66:67]")
            a(f"buffer_store_dwordx4 {vr(T,4)}, v{VO}, s[20:23], s{sO[j]} offen offset:{0 if y else 2560}", vm="st")
            if j == 2: a("s_mov_b64 exec, -1")
        ops.append(fin)
        return ops
    def dump():
        for t in range(20):
            a(f"ds_write_b128 v{VW}, {vr(AC+4*t,4)} offset:{t*1024}")
    a.c("@TS 0")
    side = {}
    for st in range(NS):
        first = st in (0, 5)
        if st == 5: dump()
        if st == 7:
            a("s_waitcnt lgkmcnt(0)"); a("s_barrier")
        if st in (7, 9, 11):
            j = (st - 7) // 2
            rd_item(j, "y"); pend = red_ops(j, "y", True)
        else: pend = []
        if st == 15: a("s_barrier")
        k = 0
        for c in range(5):
            for r in range(4):
                a.wait(vm=[("b", st, c), ("a", st, r)])
                acc = vr(AC + 4 * (r * 5 + c), 4)
                a(f"v_mfma_f32_16x16x32_bf16 {acc}, {vr(fb(st,c),4)}, {vr(fa(st,r),4)}, {'0' if first else acc}")
                k += 1
                if pend and k >= 4 and k % 2 == 0: pend.pop(0)()
            if c >= 1: ld(st + 3, 0 if c == 1 else 3 + c)
        assert not pend
        for i in (1, 2, 3, 4, 8): ld(st + 3, i)
    a.c("@TS 1")
    dump()
    a("s_waitcnt lgkmcnt(0)"); a("s_barrier")
    for j in range(3):
        rd_item(j, "o")
        for f in red_ops(j, "o", False): f()
    a.label(".Lk3_end")
    a("s_endpgm")
    return kbegin(name) + a.text()

if __name__ == "__main__":
    import k1, k2
    s = header([("k1_kernel", 256, 512, k1.K1_LDS), ("k2_kernel", 256, 512, k2.K2_LDS), ("k3_kernel", 256, 512, K3_LDS)]) + k1.gen_k1() + k2.gen_k2() + gen_k3() + '.section .rodata,"a"\n' + kdesc("k1_kernel") + kdesc("k2_kernel") + kdesc("k3_kernel")
    open("k123.s", "w").write(s)
```
